```python
import torch

def _softmax(x, axis=-1):
    return torch.softmax(x, dim=axis)
def _gelu(x):
    return torch.nn.functional.gelu(x, approximate="tanh")
def _silu(x):
    return torch.nn.functional.silu(x)
def _sigmoid(x):
    return torch.sigmoid(x)
def _layernorm(x, axis=-1, eps=1e-5):
    m = x.mean(dim=axis, keepdim=True)
    v = x.var(dim=axis, keepdim=True, unbiased=False)
    return (x - m) / torch.sqrt(v + eps)
def _scatter_add(tgt, idx, src, axis=0):
    return tgt.clone().index_add_(axis, idx, src)
def _segment_sum(src, seg, n):
    out = torch.zeros((n,) + src.shape[1:], dtype=src.dtype)
    return out.index_add_(0, seg, src)
def _pad(x, pw):
    flat = tuple(v for pair in reversed(pw) for v in pair)
    return torch.nn.functional.pad(x, flat)

kernel_name = 'gather_scatter__hybrid_graph_tf_nagphormer__graph'

def setup_inputs():

    _w = (lambda a: (lambda t: t.to(torch.bfloat16) if t.is_floating_point() else t)(torch.as_tensor(a)))
    N, deg, D = 50000, 16, 64
    E = N * deg
    src = (lambda lo, hi, *s: torch.randint(lo, hi, s))(0, N, E).to(torch.int64)
    dst = (lambda lo, hi, *s: torch.randint(lo, hi, s))(0, N, E).to(torch.int64)
    deg_cnt = torch.bincount(dst, minlength=N).to(float) + 1.0
    sc = 1.0 / D ** 0.5
    return {
        "x": _w((lambda *s: torch.randn(*s, dtype=torch.bfloat16) * 0.1)(N, D)),
        "src": _w(src),
        "dst": _w(dst),
        "deg_inv_sqrt": _w(1.0 / (lambda _x: torch.sqrt(torch.as_tensor(_x)))(deg_cnt)),
        "wq": _w((lambda *s: torch.randn(*s, dtype=torch.bfloat16) * 3.2)(D, D) * sc),
        "wk": _w((lambda *s: torch.randn(*s, dtype=torch.bfloat16) * 3.2)(D, D) * sc),
        "wv": _w((lambda *s: torch.randn(*s, dtype=torch.bfloat16) * 0.1)(D, D) * sc),
        "wo": _w((lambda *s: torch.randn(*s, dtype=torch.bfloat16) * 0.1)(D, D) * sc),
        "w_r": _w((lambda *s: torch.randn(*s, dtype=torch.bfloat16) * 0.1)(D)),
    }

def reference(x, src, dst, deg_inv_sqrt, wq, wk, wv, wo, w_r):
    N, D = x.shape[0], x.shape[1]
    K = 7
    h = x
    toks = [x]
    for _ in range(K):
        msg = h[src] * deg_inv_sqrt[src, None] * deg_inv_sqrt[dst, None]
        h = _segment_sum(msg, dst, N)
        toks.append(h)
    tok = torch.stack(toks, axis=1)
    t = _layernorm(tok, axis=-1)
    q   = torch.einsum('nkd,de->nke', t, wq)
    key = torch.einsum('nkd,de->nke', t, wk)
    v   = torch.einsum('nkd,de->nke', t, wv)
    scale = 1.0 / (D ** 0.5)
    attn = _softmax(torch.einsum('nkd,nld->nkl', q, key) * scale, axis=-1)
    o = torch.einsum('nkl,nld->nkd', attn, v)
    o = tok + torch.einsum('nkd,de->nke', o, wo)
    r = _layernorm(o, axis=-1)
    alpha = _softmax(torch.einsum('nkd,d->nk', r, w_r), axis=-1)
    return torch.einsum('nk,nkd->nd', alpha, o)
```

```python
import re

TRANS = ('v_exp_f32','v_log_f32','v_rcp_f32','v_rsq_f32','v_sqrt_f32','v_sin_f32','v_cos_f32','v_rcp_iflag_f32')

def regs_of(op):
    op = op.strip()
    op = re.sub(r'^-|^\||\|$', '', op)
    op = op.replace('abs(', '').replace(')', '')
    m = re.fullmatch(r'([vsa])(\d+)', op)
    if m: return [(m.group(1), int(m.group(2)))]
    m = re.fullmatch(r'([vsa])\[(\d+):(\d+)\]', op)
    if m: return [(m.group(1), i) for i in range(int(m.group(2)), int(m.group(3)) + 1)]
    if op == 'vcc': return [('s', 106), ('s', 107)]
    if op == 'vcc_lo': return [('s', 106)]
    if op == 'vcc_hi': return [('s', 107)]
    if op == 'exec': return [('s', 126), ('s', 127)]
    if op == 'm0': return [('s', 124)]
    return []

class Ins:
    def __init__(self, text):
        self.text = text
        t = text.split(';')[0].strip()
        parts = t.split(None, 1)
        self.mn = parts[0]
        rest = parts[1] if len(parts) > 1 else ''
        ops = []; depth = 0; cur = ''
        for ch in rest:
            if ch == '[': depth += 1
            if ch == ']': depth -= 1
            if ch == ',' and depth == 0: ops.append(cur.strip()); cur = ''
            else: cur += ch
        if cur.strip(): ops.append(cur.strip())
        mods = ''
        if ops:
            sp = ops[-1].split(None, 1)
            ops[-1] = sp[0]
            if len(sp) > 1: mods = sp[1]
        self.ops = ops; self.mods = mods
        mn = self.mn
        self.is_mfma = mn.startswith('v_mfma')
        self.is_valu = mn.startswith('v_') and not self.is_mfma
        self.is_trans = any(mn.startswith(x) for x in TRANS)
        self.is_vmem = mn.startswith('buffer_') or mn.startswith('global_')
        self.is_ds = mn.startswith('ds_')
        self.is_dpp = ('_dpp' in mn) or any(k in mods for k in ('quad_perm', 'row_', 'wave_'))
        self.is_permlane = mn.startswith('v_permlane')
        self.is_readlane = mn.startswith('v_readlane') or mn.startswith('v_readfirstlane')
        self.states = 1
        if mn == 's_nop': self.states = int(ops[0], 0) + 1
        W = []; R = []
        o = [regs_of(x) for x in ops]
        flat = lambda l: [r for x in l for r in x]
        if self.is_mfma:
            W = o[0]; R = flat(o[1:]); self.A = o[1]; self.B = o[2]; self.C = o[3]
            if 'x4_f32' in mn or 'x2_f32' in mn: self.kind = 'sgemm'; self.passes = 8 if '16x16x4' in mn else 16
            else:
                self.kind = 'xdl'; self.passes = 8 if '32x32' in mn else 4
        elif self.is_valu:
            if mn.startswith('v_cmp'):
                W = o[0]; R = flat(o[1:])
            elif mn.startswith('v_permlane') and 'swap' in mn or mn.startswith('v_swap'):
                W = o[0] + o[1]; R = o[0] + o[1]
            elif re.match(r'v_(add|sub|subrev)_co_u32', mn):
                W = o[0] + o[1]; R = flat(o[2:])
            elif re.match(r'v_(addc|subb|subbrev)_co_u32', mn):
                W = o[0] + o[1]; R = flat(o[2:])
            else:
                W = o[0]; R = flat(o[1:])
                if mn.startswith('v_cndmask') and len(ops) == 3: R += regs_of('vcc')
                if re.match(r'v_(fmac|mac|dot2c|dot4c|pk_fmac)', mn) or mn.startswith('v_writelane'): R += o[0]
                if self.is_dpp: R += o[0]
            self.dpp_src = o[1] if self.is_dpp else []
        elif self.is_vmem:
            if 'store' in mn or ('atomic' in mn):
                if mn.startswith('buffer_'):
                    R = flat(o); self.data = o[0]
                    if 'atomic' in mn and 'sc0' in mods: W = o[0]
                else:
                    if 'atomic' in mn and 'sc0' in mods: W = o[0]; R = flat(o[1:]); self.data = o[2]
                    else: R = flat(o); self.data = o[1]
            else:
                if ' lds' in (' ' + mods): R = flat(o)
                else:
                    W = o[0]; R = flat(o[1:])
                    if 'd16' in mn: R += o[0]
        elif self.is_ds:
            if mn.startswith('ds_read') or '_rtn' in mn or 'permute' in mn or 'swizzle' in mn:
                W = o[0]; R = flat(o[1:])
            else:
                R = flat(o)
        elif mn.startswith('s_'):
            if mn.startswith(('s_cmp', 's_cbranch', 's_branch', 's_waitcnt', 's_nop', 's_barrier', 's_endpgm', 's_sleep', 's_setprio', 's_bitcmp', 's_setpc')):
                R = flat(o)
            else:
                W = o[0] if o else []; R = flat(o[1:])
        self.W = set(W); self.R = set(R)
        self.wide_store = self.is_vmem and ('store' in mn) and ('x3' in mn or 'x4' in mn)

def need(p, c):
    n = 0
    pv = {r for r in p.W if r[0] in 'va'}; ps = {r for r in p.W if r[0] == 's'}
    if p.is_valu:
        if c.is_valu:
            if c.is_dpp and pv & set(c.dpp_src): n = max(n, 2)
            if c.is_readlane and pv & c.R: n = max(n, 1)
            if c.is_permlane and pv & c.R: n = max(n, 2)
            if p.is_trans and not c.is_trans and pv & c.R: n = max(n, 1)
            if ps & c.R: n = max(n, 4 if (c.is_readlane or c.mn.startswith('v_writelane')) else 2)
            if 'op_sel' in p.mods and not p.mn.startswith('v_pk') and pv & (c.R | c.W): n = max(n, 1)
            if 'sdwa' in p.mn and pv & (c.R | c.W): n = max(n, 1)
            if p.mn.startswith('v_dot'):
                same = p.mn == c.mn
                if same:
                    ab = set(regs_of(c.ops[1])) | set(regs_of(c.ops[2]))
                    if pv & ab: n = max(n, 3)
                elif pv & (c.R | c.W): n = max(n, 3)
        if p.mn.startswith('v_dot') and (c.is_mfma or c.is_ds or c.is_vmem) and pv & (c.R | c.W): n = max(n, 3)
        if c.is_vmem and ps & c.R: n = max(n, 5)
        if c.is_mfma and pv & c.R: n = max(n, 2)
    if p.wide_store and c.is_valu and set(p.data) & c.W: n = max(n, 2)
    if p.wide_store and (c.is_ds or c.is_vmem or c.is_mfma) and set(p.data) & c.W: n = max(n, 1)
    if p.is_mfma:
        x = p.kind == 'xdl'
        far = {4: 8, 8: 12}[p.passes] if x else {8: 10, 16: 18}[p.passes]
        if c.is_mfma:
            if pv & (set(c.A) | set(c.B)): n = max(n, far)
            if pv & set(c.C):
                exact = (set(c.C) == pv) and c.kind == p.kind and c.passes == p.passes
                if not exact:
                    if x: n = max(n, {4: 6, 8: 10}[p.passes])
                    elif c.kind == 'sgemm': n = max(n, {8: 8, 16: 16}[p.passes])
            elif pv & c.W: n = max(n, far)
        elif c.is_valu or c.is_vmem or c.is_ds:
            if pv & (c.R | c.W): n = max(n, far)
        if c.is_valu and x and set(p.C) & c.W: n = max(n, {4: 3, 8: 7}[p.passes])
    if p.mn.startswith('s_') and ('s', 124) in p.W and (c.is_vmem and 'lds' in c.mods): n = max(n, 1)
    return n

class Asm:
    def __init__(self):
        self.lines = []
    def __call__(self, text):
        for l in text.split('\n'):
            l = l.strip()
            if l: self.lines.append(l)
    def label(self, name): self.lines.append(name + ':')
    def raw(self, text): self.lines.append('#RAW#' + text)
    def finish(self):
        out = []; hist = []
        nops = 0
        for l in self.lines:
            if l.startswith('#RAW#'): out.append(l[5:]); continue
            if l.startswith(';') or l.startswith('.'): out.append(l); continue
            if l.endswith(':'): out.append(l); continue
            ins = Ins(l)
            req = 0; dist = 0
            for p in reversed(hist):
                req = max(req, need(p, ins) - dist)
                dist += p.states
                if dist > 20: break
            if req > 0:
                nop = Ins('s_nop %d' % (req - 1)); hist.append(nop); out.append('    ' + nop.text); nops += 1
            hist.append(ins); out.append('    ' + l)
            if ins.mn in ('s_branch', 's_endpgm', 's_setpc_b64'): hist = []
            if len(hist) > 32: hist = hist[-32:]
        self.nops = nops
        return '\n'.join(out) + '\n'
```

```python
import os
from gen import *

STOP = os.environ.get('STOP', '')
RES = 0; PLANE = 25600
STG = 76800; XT = STG + 7 * 5120; MBOX = STG
STATS = XT + 4 * 5120
INFO = STATS + 6400
STREAM = INFO + 3200
QMAX = 146
HALPHA = STREAM + QMAX * 128 + 128
ZERO = HALPHA + 128
SYNCW = ZERO + 32
LEN = SYNCW + 32
SEQ = LEN + 256
OVFI = SEQ + 128
LDS_SIZE = OVFI + 1600
LDS_SIZE = (LDS_SIZE + 255) // 256 * 256
CNT = STG; CNT2 = CNT + 2048; CUR = CNT2 + 2048; KEYS = CUR + 2048; NODEI = KEYS + 1024; NODEO = NODEI + 4096; MISC = NODEO + 1024
assert STREAM % 128 == 0 and LDS_SIZE <= 163840
OOB = 0x80000000
CAPB = 12
SPIN_LIMIT = 1 << 24
RINGN = int(os.environ.get('RINGN', 2)); PRIO = int(os.environ.get('PRIO', 0))
STM = os.environ.get('STM', 'sc1'); NOSYNC = os.environ.get('NOSYNC', ''); LDM = os.environ.get('LDM', 'sc1')
SLEEP_P = int(os.environ.get('SLEEP_P', 2)); SLEEP_W = int(os.environ.get('SLEEP_W', 1))

sLD, sST, sFL, sX, sA, sB = 8, 12, 16, 20, 24, 28
sWS = 4; sWSA = 6
sC, sP, sSEG, sSYNC, sPUB, sLIVE, sPH, sHC, sHP, sSP, sQA, sQB = range(36, 48)
sLA = 48; sLB = 52
sPC, sSPIN = 56, 57
sRET = 58; sRET2 = 60
sT = 62
sOVF, sSTART, sSH, sONE2, sC64, sW13, sWV1K = 70, 71, 72, 73, 74, 75, 76
sOV = 80
sTM = 84
sM0 = 88
sEX = 96
vLANE, vP16, vLDS, vINFO, vSTAT, vSW, vPOLL = 1, 2, 3, 4, 5, 6, 7
vSEL = 8; vENT = 16; vOFF = 20; vT = 24
vRING = 208; vACC = 128; vTOK = 160; vWM = 64; vWY = 96
vMB = 62; vSEQ = 63; sXT = 77; sFA = 78; sFB = 79

PROF = os.environ.get('PROF', '')
vTS = 61
def ts(a, hopreg, k, val=None):
    if not PROF: return
    a(f's_lshl_b32 s98, s{hopreg}, 3\ns_add_u32 s98, s98, {k}')
    if val is None:
        a(f's_memrealtime s[100:101]\ns_waitcnt lgkmcnt(0)\ns_mov_b32 m0, s98\nv_writelane_b32 v{vTS}, s100, m0')
    else:
        a(f's_mov_b32 m0, s98\nv_writelane_b32 v{vTS}, s{val}, m0')
def ts_dump(a):
    if not PROF: return
    a(f'''s_lshl_b32 s98, s2, 3
s_add_u32 s98, s98, s3
s_lshl_b32 s98, s98, 8
s_add_u32 s{sTM}, s{sWS}, {OFF_DBG + 64*MB:#x}
s_addc_u32 s{sTM+1}, s{sWS+1}, 0
s_mov_b32 s{sTM+2}, 0x80000
s_mov_b32 s{sTM+3}, 0x20000
v_lshlrev_b32 v24, 2, v{vLANE}
buffer_store_dword v{vTS}, v24, s[{sTM}:{sTM+3}], s98 offen
v_writelane_b32 v60, s{sC}, 63
s_add_u32 s98, s98, 0x80000
s_mov_b32 s{sTM+2}, 0x100000
buffer_store_dword v60, v24, s[{sTM}:{sTM+3}], s98 offen''')

def R(b, n): return f'v[{b}:{b+n-1}]'

def stats(a, vh, t, slotoff_imm):
    a(f'v_dot2_f32_bf16 v{t}, v{vh}, s{sONE2}, 0\nv_dot2_f32_bf16 v{t+1}, v{vh}, v{vh}, 0')
    for j in range(1, 4):
        a(f'v_dot2_f32_bf16 v{t}, v{vh+j}, s{sONE2}, v{t}\nv_dot2_f32_bf16 v{t+1}, v{vh+j}, v{vh+j}, v{t+1}')
    for m in ('quad_perm:[1,0,3,2]', 'quad_perm:[2,3,0,1]', 'row_half_mirror'):
        a(f'v_add_f32_dpp v{t}, v{t}, v{t} {m} row_mask:0xf bank_mask:0xf\nv_add_f32_dpp v{t+1}, v{t+1}, v{t+1} {m} row_mask:0xf bank_mask:0xf')
    a(f'''v_mul_f32 v{t}, v{t}, v{t}
v_fma_f32 v{t}, v{t+1}, s{sC64}, -v{t}
v_max_f32 v{t}, 0, v{t}
v_add_f32 v{t}, {f32(4096e-5)}, v{t}
v_rsq_f32 v{t}, v{t}
ds_write_b32 v{vSTAT}, v{t} offset:{slotoff_imm}''')

def swz(h): return (h & 1) * 128 + (h & 6) * 16

def slot_sidx_imm(i):
    return 7 * (i - 1) if i > 0 else 18

def gen_passB(a):
    a(f'''s_cmp_ge_u32 s2, {NWG}
s_cbranch_scc1 K2_END
s_load_dwordx2 s[{sX}:{sX+1}], s[0:1], {K_X}
s_load_dwordx2 s[{sB}:{sB+1}], s[0:1], {K_DIS}
s_load_dwordx2 s[{sWS}:{sWS+1}], s[0:1], {K_WS}
v_readfirstlane_b32 s3, v0
s_lshr_b32 s3, s3, 6
v_and_b32 v{vLANE}, 63, v0
s_waitcnt lgkmcnt(0)
s_mov_b32 s{sX+2}, {N*128}
s_mov_b32 s{sX+3}, 0x20000
s_mov_b32 s{sB+2}, {N*2}
s_mov_b32 s{sB+3}, 0x20000''')
    srd(a, sTM, sWS, sWS + 1, OFF_T, NWG * 1024)
    srd(a, sOV, sWS, sWS + 1, OFF_VOTES, 256)
    a(f'''v_lshrrev_b32 v24, 1, v0
v_lshlrev_b32 v25, 10, v24
s_lshl_b32 s{sT}, s2, 2
buffer_load_dword v30, v25, s[{sTM}:{sTM+3}], s{sT} offen
v_lshlrev_b32 v25, 2, v{vLANE}
buffer_load_dword v31, v25, s[{sOV}:{sOV+3}], 0 offen
s_mul_i32 s{sT+1}, s2, {NPW}
v_and_b32 v{vP16}, 7, v0
v_lshlrev_b32 v{vP16}, 4, v{vP16}
v_lshrrev_b32 v26, 3, v0''')
    for j in range(4):
        a(f'''v_add_u32 v27, {64*j}, v26
v_add_u32 v28, s{sT+1}, v27
v_lshl_add_u32 v29, v28, 7, v{vP16}
v_lshlrev_b32 v28, 1, v28''')
        if j == 3:
            a(f'''v_cmp_gt_u32 vcc, {NPW}, v27
v_cndmask_b32 v29, -1, v29, vcc''')
        a(f'''buffer_load_dwordx4 {R(64+4*j,4)}, v29, s[{sX}:{sX+3}], 0 offen
buffer_load_ushort v{80+j}, v28, s[{sB}:{sB+3}], 0 offen''')
    a(f'''v_add_lshl_u32 v28, v24, s{sT+1}, 1
buffer_load_ushort v84, v28, s[{sB}:{sB+3}], 0 offen''')
    srd(a, sA, sWS, sWS + 1, OFF_P, NWG * CH * 4)
    srd(a, sFL, sWS, sWS + 1, OFF_FLAGS, 16384)
    a(f'''s_add_u32 s{sWSA}, s{sWS}, {4*MB-1:#x}
s_addc_u32 s{sWSA+1}, s{sWS+1}, 0
s_and_b32 s{sWSA}, s{sWSA}, 0xffc00000''')
    srd(a, sST, sWSA, sWSA + 1, 0, TSIZE)
    a(f'''s_sub_u32 s{sLD}, s{sWSA}, {TSTRIDE:#x}
s_subb_u32 s{sLD+1}, s{sWSA+1}, 0
s_mov_b32 s{sLD+2}, {TSIZE:#x}
s_mov_b32 s{sLD+3}, 0x20000''')
    a(f'''v_mov_b32 v32, 0
v_mov_b32 v33, 0
v_mov_b32 v34, 0
v_mov_b32 v35, 0
v_mov_b32 v36, {OOB:#x}
v_mov_b32 v37, v36
v_mov_b32 v38, v36
v_mov_b32 v39, v36
v_lshlrev_b32 v27, 4, v0
v_add_u32 v28, {STREAM}, v27
ds_write_b128 v28, v[36:39]
ds_write_b128 v28, v[36:39] offset:8192
v_add_u32 v29, {CNT}, v27
v_cmp_gt_u32 vcc, {(QMAX*128+128-16384)//16}, v0
s_and_saveexec_b64 s[{sEX}:{sEX+1}], vcc
ds_write_b128 v28, v[36:39] offset:16384
v_cmp_gt_u32 vcc, {(32+32+256+128)//16}, v0
s_and_b64 exec, exec, vcc
v_add_u32 v28, {ZERO}, v27
ds_write_b128 v28, v[32:35]
ds_write_b128 v29, v[32:35] offset:{MISC-CNT}
s_mov_b64 exec, s[{sEX}:{sEX+1}]
v_cmp_gt_u32 vcc, {6144//16}, v0
s_and_saveexec_b64 s[{sEX}:{sEX+1}], vcc
ds_write_b128 v29, v[32:35]
s_mov_b64 exec, s[{sEX}:{sEX+1}]''')
    a(f'''s_waitcnt vmcnt(10)
v_and_b32 v40, 0xffff, v30
v_lshrrev_b32 v41, 16, v30
v_sub_u32 v41, v41, v40
v_mul_u32_u24 v42, {CH}, v24
v_add_lshl_u32 v42, v42, v40, 2
v_and_b32 v43, 1, v0
v_lshlrev_b32 v44, 2, v43
v_sub_u32 v41, v41, v44
v_lshl_add_u32 v42, v43, 4, v42''')
    for i in range(4):
        a(f'''v_cmp_lt_i32 vcc, {8*i}, v41
v_cndmask_b32 v45, v36, v42, vcc
buffer_load_dwordx4 {R(96+4*i,4)}, v45, s[{sA}:{sA+3}], 0 offen offset:{32*i}''')
    a(f'''s_waitcnt vmcnt(13)
v_cmp_ne_u32 vcc, 0, v31
s_bcnt1_i32_b64 s{sT+2}, vcc
s_getreg_b32 s{sT+3}, hwreg(HW_REG_XCC_ID)
s_lshr_b32 s{sT+3}, s{sT+3}, 2
s_cmp_gt_u32 s{sT+2}, 32
s_cselect_b32 s{sT+2}, 1, 0
s_xor_b32 s{sT+2}, s{sT+2}, s{sT+3}
s_and_b32 s{sT+2}, s{sT+2}, 1
{'s_xor_b32 s%d, s%d, 1' % (sT+2, sT+2) if os.environ.get('FLIP') else ''}
s_lshl_b32 s{sW13}, s{sT+2}, 13
v_mov_b32 v46, s2''')
    for j in range(4):
        b = 64 + 4 * j
        a(f'v_add_u32 v27, {64*j}, v26')
        if j == 3: a('v_mov_b32 v51, v27')
        rowoff(a, 47, 46, 27, 48, 49)
        a(f'''v_xor_b32 v48, 0x2000, v47
v_cndmask_b32 v48, v36, v48, vcc''')
        if j == 3:
            a(f'''v_cmp_gt_u32 vcc, {NPW}, v51
v_cndmask_b32 v47, v36, v47, vcc''')
        a(f'''v_add_u32 v47, v47, v{vP16}
v_add_u32 v48, v48, v{vP16}
s_waitcnt vmcnt({4 + 1 + 2*(3-j) + 2*j})
v_lshlrev_b32 v50, 16, v{80+j}''')
        for k in range(4):
            a(f'''v_lshlrev_b32 v52, 16, v{b+k}
v_and_b32 v53, 0xffff0000, v{b+k}
v_mul_f32 v52, v50, v52
v_mul_f32 v53, v50, v53
v_cvt_pk_bf16_f32 v{b+k}, v52, v53''')
        a(f'''buffer_store_dwordx4 {R(b,4)}, v47, s[{sST}:{sST+3}], 0 offen sc1
buffer_store_dwordx4 {R(b,4)}, v48, s[{sST}:{sST+3}], 0 offen sc1''')
    a(f'''s_add_u32 s{sST}, s{sST}, {TSTRIDE:#x}
s_addc_u32 s{sST+1}, s{sST+1}, 0
v_mov_b32 v50, 1
s_waitcnt lgkmcnt(0)
s_barrier
s_waitcnt vmcnt(8)''')
    for i in range(4):
        for k in range(4):
            e = 96 + 4 * i + k
            a(f'''v_cmp_lt_i32 vcc, {8*i+k}, v41
s_cbranch_vccz K2_CNT_DONE
s_mov_b64 exec, vcc
v_alignbit_b32 v52, v{e}, v{e}, 22
v_and_b32 v52, 0x7fc, v52
v_add_u32 v52, {CNT}, v52
ds_add_rtn_u32 v{e+16}, v52, v50''')
    a(f'''s_mov_b64 exec, -1
v_subrev_u32 v54, 32, v41
v_add_u32 v55, 128, v42''')
    a.label('K2_CNT_TAIL')
    a(f'''v_cmp_lt_i32 vcc, 0, v54
s_cbranch_vccz K2_CNT_DONE
s_mov_b64 exec, vcc
buffer_load_dwordx4 v[56:59], v55, s[{sA}:{sA+3}], 0 offen
s_waitcnt vmcnt(0)''')
    for k in range(4):
        a(f'''v_cmp_lt_i32 vcc, {k}, v54
s_mov_b64 exec, vcc
v_alignbit_b32 v52, v{56+k}, v{56+k}, 22
v_and_b32 v52, 0x7fc, v52
v_add_u32 v52, {CNT2}, v52
ds_add_u32 v52, v50''')
    a(f'''s_mov_b64 exec, -1
v_subrev_u32 v54, 8, v54
v_add_u32 v55, 32, v55
s_branch K2_CNT_TAIL''')
    a.label('K2_CNT_DONE')
    a(f'''s_mov_b64 exec, -1
s_and_b32 s{sSH}, s2, 63
s_lshl_b32 s{sSH}, s{sSH}, 7
s_waitcnt vmcnt(0) lgkmcnt(0)
s_barrier
s_cmp_lg_u32 s3, 7
s_cbranch_scc1 K2_NOPUB0
s_mov_b64 exec, 3
v_lshlrev_b32 v52, 13, v{vLANE}
buffer_atomic_add v50, v52, s[{sFL}:{sFL+3}], s{sSH} offen sc1
s_mov_b64 exec, -1
s_branch K2_NODE_SKIP1''')
    a.label('K2_NOPUB0')
    a(f'''v_lshlrev_b32 v52, 2, v24
v_add_u32 v52, {CNT}, v52
ds_read_b32 v56, v52
ds_read_b32 v57, v52 offset:1024
ds_read_b32 v58, v52 offset:2048
ds_read_b32 v59, v52 offset:3072
s_waitcnt lgkmcnt(0)
v_add_u32 v56, v56, v58
v_add_u32 v57, v57, v59
v_cmp_lt_u32 vcc, {int(os.environ.get('A8', 7)) - 1}, v56
v_cndmask_b32 v58, 4, 8, vcc
v_cndmask_b32 v60, 0, 1, vcc
v_min_u32 v58, v58, v56
v_add_u32 v59, v56, v57
v_sub_u32 v59, v59, v58
v_sub_u32 v61, 255, v24
v_lshl_or_b32 v61, v59, 8, v61
v_lshl_or_b32 v61, v60, 28, v61
v_cmp_gt_u32 vcc, {NE}, v24
v_cndmask_b32 v62, 0, 1, vcc
v_lshl_or_b32 v61, v62, 29, v61
ds_write_b32 v52, v61 offset:{KEYS-CNT}''')
    a.label('K2_NODE_SKIP1')
    a(f'''s_waitcnt lgkmcnt(0)
s_barrier
s_cmp_eq_u32 s3, 7
s_cbranch_scc1 K2_NODE_SKIP2
s_mov_b32 s{sT+3}, 25
v_mul_u32_u24 v52, 400, v43
v_add_u32 v52, {KEYS}, v52
v_mov_b32 v62, 0
ds_read_b128 v[64:67], v52''')
    a.label('K2_RANK')
    a(f'''s_waitcnt lgkmcnt(0)
v_cmp_gt_u32 s[{sM0}:{sM0+1}], v64, v61
v_cmp_gt_u32 s[{sM0+2}:{sM0+3}], v65, v61
v_cmp_gt_u32 s[{sM0+4}:{sM0+5}], v66, v61
v_cmp_gt_u32 s[{sM0+6}:{sM0+7}], v67, v61
v_add_u32 v52, 16, v52
ds_read_b128 v[64:67], v52
v_addc_co_u32 v62, vcc, 0, v62, s[{sM0}:{sM0+1}]
v_addc_co_u32 v62, vcc, 0, v62, s[{sM0+2}:{sM0+3}]
v_addc_co_u32 v62, vcc, 0, v62, s[{sM0+4}:{sM0+5}]
v_addc_co_u32 v62, vcc, 0, v62, s[{sM0+6}:{sM0+7}]
s_sub_u32 s{sT+3}, s{sT+3}, 1
s_cmp_lg_u32 s{sT+3}, 0
s_cbranch_scc1 K2_RANK
s_waitcnt lgkmcnt(0)
v_add_u32_dpp v62, v62, v62 quad_perm:[1,0,3,2] row_mask:0xf bank_mask:0xf
v_lshrrev_b32 v63, 3, v62
v_and_b32 v62, 7, v62
v_mov_b32 v64, v63
v_mov_b32 v65, 1
v_mov_b32 v66, 0
v_cmp_lt_u32 vcc, 2, v63
v_cndmask_b32 v65, v65, 0, vcc
v_cndmask_b32 v66, v66, 18, vcc
v_subrev_u32 v67, 4, v63
v_cmp_lt_u32 vcc, 6, v63
v_cndmask_b32 v64, v64, v67, vcc
v_cndmask_b32 v65, v65, 1, vcc
v_cndmask_b32 v66, v66, 0, vcc
v_sub_u32 v67, 17, v63
v_cmp_lt_u32 vcc, 10, v63
v_cndmask_b32 v64, v64, v67, vcc
v_cndmask_b32 v65, v65, 2, vcc
v_cndmask_b32 v66, v66, 7, vcc
v_subrev_u32 v67, 18, v63
v_cmp_lt_u32 vcc, 17, v63
v_cndmask_b32 v64, v64, v67, vcc
v_cndmask_b32 v65, v65, 3, vcc
v_cndmask_b32 v66, v66, 14, vcc
v_add_u32 v66, v66, v64''')
    a(f'''v_lshl_add_u32 v67, v64, 3, v65
v_lshl_add_u32 v68, v66, 3, v62
v_cmp_gt_u32 vcc, 200, v24
s_and_saveexec_b64 s[{sEX}:{sEX+1}], vcc
v_lshlrev_b32 v52, 2, v67
v_add_u32 v52, {LEN}, v52
v_add_u32 v53, 1, v60
ds_max_u32 v52, v53
v_add_u32 v53, 3, v59
v_lshrrev_b32 v53, 2, v53
v_max_u32 v53, 1, v53
ds_max_u32 v52, v53 offset:16
v_mov_b32 v27, v24''')
    rowoff(a, 72, 46, 27, 48, 49)
    a(f'''v_xor_b32 v73, 0x2000, v72
v_cndmask_b32 v73, v36, v73, vcc
v_lshlrev_b32 v74, 16, v84
v_add_u32 v75, s{sT+1}, v24
s_mov_b32 s{sT}, {N}
v_cmp_gt_u32 s[{sM0}:{sM0+1}], s{sT}, v75
v_cmp_gt_u32 vcc, {NPW}, v24
s_and_b64 vcc, vcc, s[{sM0}:{sM0+1}]
v_lshlrev_b32 v75, 7, v75
v_cndmask_b32 v72, v36, v72, vcc
v_cndmask_b32 v73, v36, v73, vcc
v_cndmask_b32 v74, 0, v74, vcc
v_cndmask_b32 v75, v36, v75, vcc
v_lshlrev_b32 v52, 4, v68
v_add_u32 v52, {INFO}, v52
ds_write_b128 v52, v[72:75]
s_mov_b64 exec, s[{sEX}:{sEX+1}]''')
    a.label('K2_NODE_SKIP2')
    a(f'''v_lshrrev_b32 v76, 4, v{vLANE}
v_and_b32 v77, 1, v76
v_lshlrev_b32 v77, 2, v77
v_and_b32 v76, 2, v76
v_bfe_u32 v78, v{vLANE}, 3, 1
v_or3_b32 v76, v76, v77, v78
s_lshl_b32 s{sT}, s3, 3
v_add_u32 v77, s{sT}, v76
v_lshlrev_b32 v{vINFO}, 4, v77
v_add_u32 v{vINFO}, {INFO}, v{vINFO}
v_lshlrev_b32 v{vSTAT}, 5, v77
v_add_u32 v{vSTAT}, {STATS}, v{vSTAT}
v_lshl_add_u32 v{vSW}, v76, 7, v{vP16}
s_lshl_b32 s{sWV1K}, s3, 10
v_lshlrev_b32 v78, 2, v{vLANE}
v_add_u32 v78, {LEN}, v78
s_waitcnt lgkmcnt(0)
s_barrier
ds_read_b32 v79, v78''')
    for i in range(4):
        a(f'ds_read_b32 v{88+i}, v{vINFO} offset:{slot_sidx_imm(i)*128 + 12}')
    a(f'''s_waitcnt lgkmcnt(4)
v_mov_b32 v80, v79''')
    wave_scan_incl(a, 80, 81)
    a(f'''v_readlane_b32 s{sT}, v80, 63
s_mov_b32 s{sOVF}, 0
s_cmp_le_u32 s{sT}, {QMAX}
s_cbranch_scc1 K2_NOCAP
s_mov_b32 s{sOVF}, 1
v_min_u32 v79, {CAPB//4}, v79
v_mov_b32 v80, v79''')
    wave_scan_incl(a, 80, 81)
    a.label('K2_NOCAP')
    a(f'''s_nop 1
v_sub_u32 v80, v80, v79
v_lshlrev_b32 v80, 7, v80
v_add_u32 v80, {STREAM}, v80
s_lshl_b32 s{sT}, s3, 3
s_waitcnt lgkmcnt(0)''')
    for i in range(4):
        a(f'v_add_u32 v{88+i}, v{88+i}, v{vP16}')
        if i == 0: a(f's_cmp_ge_u32 s3, 3\ns_cselect_b64 vcc, -1, 0\nv_cndmask_b32 v{88+i}, v36, v{88+i}, vcc')
        a(f'buffer_load_dwordx4 {R(vTOK+4*i,4)}, v{88+i}, s[{sX}:{sX+3}], 0 offen')
    a(f'v_readlane_b32 s{sSTART}, v80, s{sT}')
    for i in range(8):
        a(f'v_readlane_b32 s{sLA+i}, v79, s{sT}')
        if i < 7: a(f's_add_u32 s{sT}, s{sT}, 1')
    a(f'''v_lshlrev_b32 v52, 2, v67
v_add_u32 v53, 16, v52
ds_bpermute_b32 v82, v52, v80
ds_bpermute_b32 v83, v53, v80
s_cmp_eq_u32 s3, 7
s_cbranch_scc1 K2_NODE_SKIP3
v_and_b32 v52, 1, v62
v_lshlrev_b32 v52, 4, v52
v_and_b32 v53, 6, v62
v_lshl_add_u32 v52, v53, 1, v52
v_mov_b32 v84, v58
v_mov_b32 v85, v56
v_lshlrev_b32 v53, 4, v24
v_add_u32 v53, {NODEI}, v53
s_waitcnt lgkmcnt(0)
v_add_u32 v82, v82, v52
v_add_u32 v83, v83, v52
ds_write_b128 v53, v[82:85]''')
    a.label('K2_NODE_SKIP3')
    srd(a, sOV, sWS, sWS + 1, OFF_OVF, E * 4)
    a(f'''s_cmp_eq_u32 s{sOVF}, 0
s_cbranch_scc1 K2_NOOVF1
v_mov_b32 v52, {MISC}
v_cmp_eq_u32 vcc, 0, v43
s_and_saveexec_b64 s[{sEX}:{sEX+1}], vcc
ds_add_u32 v52, v40
s_mov_b64 exec, s[{sEX}:{sEX+1}]
s_waitcnt lgkmcnt(0)
s_barrier
s_cmp_eq_u32 s3, 7
s_cbranch_scc1 K2_NOOVF1
v_cmp_gt_u32 s[{sM0}:{sM0+1}], 1, v43
s_movk_i32 s{sT}, 200
v_cmp_gt_u32 vcc, s{sT}, v24
s_and_b64 vcc, vcc, s[{sM0}:{sM0+1}]
s_and_saveexec_b64 s[{sEX}:{sEX+1}], vcc
v_max_u32 v55, {CAPB}, v59
v_subrev_u32 v55, {CAPB}, v55
ds_add_rtn_u32 v54, v52, v55
v_lshlrev_b32 v53, 2, v24
v_add_u32 v53, {NODEO}, v53
v_lshlrev_b32 v52, 3, v68
v_add_u32 v52, {OVFI}, v52
s_waitcnt lgkmcnt(0)
v_lshlrev_b32 v54, 2, v54
ds_write_b32 v53, v54
ds_write_b64 v52, v[54:55]
s_mov_b64 exec, s[{sEX}:{sEX+1}]''')
    a.label('K2_NOOVF1')
    a(f'''s_cmp_eq_u32 s{sOVF}, 0
s_cselect_b32 s{sT+4}, -1, {CAPB}
s_mov_b32 s{sT+5}, 0xffff80
v_mov_b32 v51, s{sW13}
s_waitcnt lgkmcnt(0)
s_barrier''')

    def place(e, rk, ni, lab):
        a(f'''v_and_b32 v52, 1, v{e}
v_mul_lo_u32 v52, v52, v{ni+3}
v_add_u32 v52, v52, v{rk}
v_sub_u32 v53, v52, v{ni+2}
v_cmp_lt_u32 vcc, v52, v{ni+2}
v_cndmask_b32 v52, v53, v52, vcc
v_cndmask_b32 v53, v{ni+1}, v{ni}, vcc
v_lshlrev_b32 v54, 12, v{e}
v_and_b32 v54, v54, v51
v_and_b32 v55, s{sT+5}, v{e}
v_xor_b32 v55, v55, v54
v_cmp_le_u32 vcc, s{sT+4}, v52
s_cbranch_vccz {lab}
s_mov_b64 s[{sEX}:{sEX+1}], exec
s_mov_b64 exec, vcc
v_lshrrev_b32 v54, 22, v{e}
v_and_b32 v54, 0x3fc, v54
v_add_u32 v54, {NODEO}, v54
ds_read_b32 v54, v54
v_subrev_u32 v60, {CAPB}, v52
s_waitcnt lgkmcnt(0)
v_lshl_add_u32 v54, v60, 2, v54
buffer_store_dword v55, v54, s[{sOV}:{sOV+3}], 0 offen
s_andn2_b64 exec, s[{sEX}:{sEX+1}], exec''')
        a.label(lab)
        a(f'''v_lshrrev_b32 v54, 2, v52
v_lshl_add_u32 v53, v54, 7, v53
v_and_b32 v52, 3, v52
v_lshl_add_u32 v53, v52, 5, v53
ds_write_b32 v53, v55''')

    for i in range(4):
        a(f'''s_mov_b64 exec, -1
v_cmp_lt_i32 vcc, {8*i}, v41
s_cbranch_vccz K2_PLACE_DONE''')
        for k in range(4):
            e = 96 + 4 * i + k
            a(f'''v_lshrrev_b32 v52, 20, v{e}
v_and_b32 v52, 0xff0, v52
v_add_u32 v52, {NODEI}, v52
ds_read_b128 {R(64+4*k,4)}, v52''')
        a('s_waitcnt lgkmcnt(0)')
        for k in range(4):
            e = 96 + 4 * i + k
            a(f'''s_mov_b64 exec, -1
v_cmp_lt_i32 vcc, {8*i+k}, v41
s_mov_b64 exec, vcc''')
            place(e, e + 16, 64 + 4 * k, f'K2_PL{i}{k}')
    a(f'''s_mov_b64 exec, -1
v_subrev_u32 v56, 32, v41
v_add_u32 v57, 128, v42''')
    a.label('K2_PL_TAIL')
    a(f'''v_cmp_lt_i32 vcc, 0, v56
s_cbranch_vccz K2_PLACE_DONE
s_mov_b64 exec, vcc
buffer_load_dwordx4 v[96:99], v57, s[{sA}:{sA+3}], 0 offen
s_waitcnt vmcnt(0)''')
    for k in range(4):
        e = 96 + k
        a(f'''s_mov_b64 exec, -1
v_cmp_lt_i32 vcc, {k}, v56
s_mov_b64 exec, vcc
v_alignbit_b32 v52, v{e}, v{e}, 22
v_and_b32 v52, 0x7fc, v52
v_add_u32 v52, {CNT}, v52
ds_read_b32 v58, v52
ds_add_rtn_u32 v59, v52, v50 offset:{CUR-CNT}
v_lshrrev_b32 v52, 20, v{e}
v_and_b32 v52, 0xff0, v52
v_add_u32 v52, {NODEI}, v52
ds_read_b128 v[64:67], v52
s_waitcnt lgkmcnt(0)
v_add_u32 v59, v59, v58''')
        place(e, 59, 64, f'K2_PLT{k}')
    a(f'''s_mov_b64 exec, -1
v_subrev_u32 v56, 8, v56
v_add_u32 v57, 32, v57
s_branch K2_PL_TAIL''')
    a.label('K2_PLACE_DONE')
    a(f'''s_mov_b64 exec, -1
s_mov_b32 s{sONE2}, 0x3f803f80
s_mov_b32 s{sC64}, {f32(64.0)}
s_waitcnt vmcnt(0)
v_add_u32 v52, s{sWV1K}, v{vSW}''')
    a('s_cmp_eq_u32 s3, 7\ns_cbranch_scc1 K2_TOK0_DONE')
    for i in (1, 2, 3, 0):
        if i == 0: a('s_cmp_lt_u32 s3, 3\ns_cbranch_scc1 K2_TOK0_DONE')
        a(f'ds_write_b128 v52, {R(vTOK+4*i,4)} offset:{RES + slot_sidx_imm(i)*1024}')
        stats(a, vTOK + 4 * i, 54, slot_sidx_imm(i) * 256)
    a.label('K2_TOK0_DONE')
    a(f'''v_add_u32 v{vSTAT}, 4, v{vSTAT}
v_and_b32 v52, 15, v{vLANE}
v_and_b32 v53, 1, v52
v_lshlrev_b32 v53, 4, v53
v_lshlrev_b32 v53, v53, v50
v_mul_u32_u24 v53, 0x3f80, v53
v_lshrrev_b32 v52, 1, v52''')
    for j in range(8):
        a(f'v_cmp_eq_u32 vcc, {j}, v52\nv_cndmask_b32 v{vSEL+j}, 0, v53, vcc')
    for j in range(32): a(f'v_mov_b32 v{vACC+j}, 0')
    a(f'''v_lshlrev_b32 v{vPOLL}, 7, v{vLANE}
v_lshrrev_b32 v52, 3, v{vLANE}
v_lshlrev_b32 v52, 4, v52
v_add_u32 v0, s{sSTART}, v52
s_add_u32 s{sQA}, s{sLA}, s{sLA+1}
s_add_u32 s{sQA}, s{sQA}, s{sLA+2}
s_add_u32 s{sQA}, s{sQA}, s{sLA+3}
s_add_u32 s{sQB}, s{sLB}, s{sLB+1}
s_add_u32 s{sQB}, s{sQB}, s{sLB+2}
s_add_u32 s{sQB}, s{sQB}, s{sLB+3}
s_mov_b32 s{sC}, 0
s_mov_b32 s{sP}, 0
s_mov_b32 s{sSEG}, s{sLA}
s_mov_b32 s{sSYNC}, 0
s_mov_b32 s{sLIVE}, 0
s_mov_b32 s{sPH}, 0
s_mov_b32 s{sHC}, 1
s_mov_b32 s{sHP}, 0
s_mov_b32 s{sSP}, 1
s_mov_b32 s{sSPIN}, 0
s_add_u32 s{sXT}, s{sWV1K}, {XT - 3*1024}
s_cmp_eq_u32 s{sLA}, 0
s_cselect_b32 s{sFA}, s{sLA+1}, s{sLA}
s_cselect_b32 s{sFB}, s{sLB+1}, s{sLB}
s_mov_b32 s{sSEG}, s{sFA}
v_lshlrev_b32 v{vMB}, 4, v{vLANE}
v_add_u32 v{vMB}, {MBOX}, v{vMB}
v_add_u32 v{vMB}, s{sWV1K}, v{vMB}
s_lshl_b32 s{sT}, s3, 2
s_add_u32 s{sT}, s{sT}, {SEQ}
v_mov_b32 v{vSEQ}, s{sT}
s_waitcnt lgkmcnt(0)
s_barrier''')

def dump_lds(a):
    a(f'''s_waitcnt vmcnt(0) lgkmcnt(0)
s_barrier
s_mul_i32 s{sT}, s2, {LDS_SIZE}
s_add_u32 s{sTM}, s{sWS}, {OFF_DBG:#x}
s_addc_u32 s{sTM+1}, s{sWS+1}, 0
s_add_u32 s{sTM}, s{sTM}, s{sT}
s_addc_u32 s{sTM+1}, s{sTM+1}, 0
s_mov_b32 s{sTM+2}, {LDS_SIZE}
s_mov_b32 s{sTM+3}, 0x20000
s_lshl_b32 s{sT}, s3, 10
v_lshlrev_b32 v24, 4, v{vLANE}
v_add_u32 v24, s{sT}, v24
s_mov_b32 s{sT}, 0''')
    a.label('K2_DUMP')
    a(f'''ds_read_b128 v[28:31], v24
s_waitcnt lgkmcnt(0)
buffer_store_dwordx4 v[28:31], v24, s[{sTM}:{sTM+3}], 0 offen
v_add_u32 v24, 8192, v24
s_add_u32 s{sT}, s{sT}, 8192
s_cmp_lt_u32 s{sT}, {LDS_SIZE}
s_cbranch_scc1 K2_DUMP
s_endpgm''')

def gen_engine(a):
    ld = f's[{sLD}:{sLD+3}]'
    RN = RINGN; FULL = (1 << RN) - 1
    def issue(r):
        ring = vRING + 16 * r
        a('s_waitcnt lgkmcnt(0)')
        for k in range(4): a(f'v_add_u32 v{vOFF+k}, v{vENT+k}, v{vP16}')
        a(f'v_add_u32 v{vLDS}, 128, v{vLDS}')
        for k in range(4): a(f'buffer_load_dwordx4 {R(ring+4*k,4)}, v{vOFF+k}, {ld}, 0 offen {LDM}')
        a(f'ds_read_b128 {R(vENT,4)}, v{vLDS}\ns_add_u32 s{sP}, s{sP}, 1')
    def prio(p):
        if PRIO: a(f's_setprio {p}')
    for i in range(4):
        acc = vACC + 8 * i
        for r in range(RN):
            ring = vRING + 16 * r
            a.label(f'S{i}{r}')
            a(f'''s_cmp_lg_u32 s{sLIVE}, {FULL}
s_cbranch_scc1 SLOW{i}{r}
s_waitcnt vmcnt({4*(RN-1)})''')
            a.label(f'C{i}{r}')
            if PROF == '2':
                a(f's_memrealtime s[100:101]\ns_and_b32 m0, s{sC}, 63\ns_waitcnt lgkmcnt(0)\nv_writelane_b32 v60, s100, m0')
            for k in range(4):
                c = acc + 4 * (k >> 1)
                a(f'v_mfma_f32_16x16x32_bf16 {R(c,4)}, {R(vSEL+4*(k&1),4)}, {R(ring+4*k,4)}, {R(c,4)}')
            a(f'''s_add_u32 s{sC}, s{sC}, 1
s_cmp_eq_u32 s{sC}, s{sSEG}
s_cbranch_scc1 EV{i}{r}''')
            a.label(f'P{i}{r}')
            a(f'''s_cmp_eq_u32 s{sP}, s{sSYNC}
s_cbranch_scc1 XSYNC{i}{r}''')
            a.label(f'I{i}{r}')
            issue(r)
            if r == RN - 1: a(f's_branch S{i}0')
    for i in range(4):
        for r in range(RN):
            r1 = (r + 1) % RN
            a.label(f'SLOW{i}{r}')
            a(f'''s_bitcmp1_b32 s{sLIVE}, {r}
s_cbranch_scc0 NL{i}{r}
s_waitcnt vmcnt(0)
s_branch C{i}{r}''')
            a.label(f'NL{i}{r}')
            a(f's_bitset1_b32 s{sLIVE}, {r}\ns_branch P{i}{r}')
            a.label(f'XSYNC{i}{r}')
            a(f'''s_call_b64 s[{sRET}:{sRET+1}], SYNC
s_cbranch_scc1 I{i}{r}
s_bitset0_b32 s{sLIVE}, {r}
s_branch S{i}{r1}''')
            a.label(f'EV{i}{r}')
            a(f'''s_cmp_eq_u32 s{sPH}, 0
s_cbranch_scc0 EVB{i}{r}''')
            def gofirst(tgt): a(f's_cmp_eq_u32 s{sLA}, 0\ns_cbranch_scc1 {tgt % 1}\ns_branch {tgt % 0}')
            if i < 3: a(f's_add_u32 s{sSEG}, s{sSEG}, s{sLA+i+1}\ns_branch P{i+1}{r}')
            else:
                a(f's_mov_b32 s{sPH}, 1\ns_add_u32 s{sSEG}, s{sSEG}, s{sFB}')
                gofirst('P%d' + str(r))
            a.label(f'EVB{i}{r}')
            for first, tgt in ((1, 'S%d' + str(r1)), (0, 'P%d' + str(r))):
                if first:
                    a(f's_cmp_eq_u32 s{sP}, s{sSYNC}\ns_cbranch_scc1 EVC{i}{r}')
                    issue(r)
                else:
                    a.label(f'EVC{i}{r}')
                a(f's_call_b64 s[{sRET}:{sRET+1}], FIN{i}')
                if i < 3: a(f's_add_u32 s{sSEG}, s{sSEG}, s{sLB+i+1}\ns_branch {tgt % (i+1)}')
                else:
                    a(f's_call_b64 s[{sRET}:{sRET+1}], WRAP')
                    gofirst(tgt)
    a.label('WRAP')
    ts(a, sHC, 3)
    a(f'''s_cmp_eq_u32 s{sHC}, 7
s_cbranch_scc1 ENGINE_DONE
s_add_u32 s{sHC}, s{sHC}, 1
s_mov_b32 s{sPH}, 0
s_add_u32 s{sSEG}, s{sSEG}, s{sFA}
s_add_u32 s{sST}, s{sST}, {TSTRIDE:#x}
s_addc_u32 s{sST+1}, s{sST+1}, 0
v_add_u32 v{vSTAT}, 4, v{vSTAT}
s_setpc_b64 s[{sRET}:{sRET+1}]''')
    a.label('SYNC')
    a(f'''s_lshl_b32 s{sT+1}, s{sSP}, 2
s_xor_b32 s{sT+1}, s{sT+1}, 4
s_add_u32 s{sT+2}, s{sHP}, s{sSP}
s_cmp_eq_u32 s{sT+2}, 8
s_cbranch_scc1 SY_NO
{'s_branch SY_OK' if NOSYNC else ''}
{('s_cmp_eq_u32 s%d, 0' % sSP + chr(10) + 's_cbranch_scc1 SY_OK' + chr(10) + 's_mov_b32 s%d, 4' % (sT+1)) if os.environ.get('FULLBAR') else ''}
s_add_u32 s{sT}, s{sT+1}, {SYNCW}
v_mov_b32 v{vT+3}, s{sT}
ds_read_b32 v{vT+4}, v{vT+3}
s_waitcnt lgkmcnt(0)
v_readfirstlane_b32 s{sT}, v{vT+4}
s_cmp_ge_u32 s{sT}, s{sT+2}
s_cbranch_scc0 SY_FAIL''')
    a.label('SY_OK')
    a(f's_cmp_eq_u32 s{sSP}, 0\ns_cbranch_scc0 SY_WRAP')
    ts(a, sHP, 1); ts(a, sHP, 5, sSPIN)
    a(f'''s_add_u32 s{sSYNC}, s{sSYNC}, s{sQB}
s_mov_b32 s{sSP}, 1
s_cmp_eq_u32 s{sSP}, 1
s_setpc_b64 s[{sRET}:{sRET+1}]''')
    a.label('SY_WRAP')
    a(f'''v_mov_b32 v{vLDS}, v0
ds_read_b128 {R(vENT,4)}, v0
s_add_u32 s{sHP}, s{sHP}, 1''')
    ts(a, sHP, 0); ts(a, sHP, 4, sSPIN)
    a(f'''s_add_u32 s{sLD}, s{sLD}, {TSTRIDE:#x}
s_addc_u32 s{sLD+1}, s{sLD+1}, 0
s_add_u32 s{sSYNC}, s{sSYNC}, s{sQA}
s_mov_b32 s{sSP}, 0
s_cmp_eq_u32 s{sSP}, 0
s_setpc_b64 s[{sRET}:{sRET+1}]''')
    a.label('SY_FAIL')
    a(f'''s_bcnt1_i32_b32 s{sT}, s{sLIVE}
s_cmp_gt_u32 s{sT}, 1
s_cbranch_scc1 SY_NO
s_sleep {SLEEP_W}
s_add_u32 s{sSPIN}, s{sSPIN}, 1
s_cmp_gt_u32 s{sSPIN}, {SPIN_LIMIT}
s_cbranch_scc1 K2_END''')
    a.label('SY_NO')
    a(f's_cmp_lg_u32 s{sSP}, s{sSP}\ns_setpc_b64 s[{sRET}:{sRET+1}]')
    vI = vT + 8; vH = vT + 12; vG = vT + 16; vS = vT + 20
    for i in range(4):
        acc = vACC + 8 * i; si = slot_sidx_imm(i)
        a.label(f'FIN{i}')
        a(f'''ds_read_b32 v{vI+2}, v{vINFO} offset:{si*128+8}
s_cmp_lg_u32 s{sOVF}, 0
s_cbranch_scc1 OVF{i}''')
        a.label(f'FINB{i}')
        a('s_nop 5')
        for r in range(4): a(f'v_permlane16_swap_b32 v{acc+r}, v{acc+4+r}')
        a('s_waitcnt lgkmcnt(0)')
        for r in range(4): a(f'v_pk_mul_f32 {R(acc+2*r,2)}, {R(acc+2*r,2)}, {R(vI+2,2)} op_sel_hi:[1,0]')
        for r in range(4): a(f'v_cvt_pk_bf16_f32 v{vH+r}, v{acc+2*r}, v{acc+2*r+1}')
        a(f's_cmp_eq_u32 s{sHC}, 7\ns_cbranch_scc1 FINS{i}')
        for r in range(4): a(f'v_pk_mul_f32 {R(acc+2*r,2)}, {R(acc+2*r,2)}, {R(vI+2,2)} op_sel_hi:[1,0]')
        a(f'v_mov_b32 v{vI}, s{sHC}')
        for r in range(4): a(f'v_cvt_pk_bf16_f32 v{vG+r}, v{acc+2*r}, v{acc+2*r+1}')
        a(f'ds_write_b128 v{vMB}, {R(vG,4)} offset:{si*1024}\nds_write_b32 v{vSEQ}, v{vI} offset:{si*4}')
        for r in range(8): a(f'v_mov_b32 v{acc+r}, 0')
        a.label(f'FINS{i}')
        if i == 1: ts(a, sHC, 2)
        stats(a, vH, vS, si * 256)
        for h in range(1, 8):
            if h < 7: a(f's_cmp_eq_u32 s{sHC}, {h}\ns_cbranch_scc0 FH{i}{h+1}')
            if h < 3:
                a(f'''v_xor_b32 v{vS+2}, {swz(h)}, v{vSW}
s_add_u32 s{sT}, s{sWV1K}, {RES + h*PLANE}
v_add_u32 v{vS+2}, s{sT}, v{vS+2}
ds_write_b128 v{vS+2}, {R(vH,4)} offset:{si*1024}''')
            elif i == 0:
                a(f'''v_xor_b32 v{vS+2}, {swz(h)}, v{vSW}
v_add_u32 v{vS+2}, s{sXT}, v{vS+2}
ds_write_b128 v{vS+2}, {R(vH,4)} offset:{(h-3)*4096}''')
                if h == 7: a(f'v_mov_b32 v{vI}, 7\nds_write_b32 v{vSEQ}, v{vI} offset:{si*4}')
            else:
                d = vTOK + 16 * (i - 1) + 4 * (h - 3) if h < 7 else acc
                for r in range(4): a(f'v_mov_b32 v{d+r}, v{vH+r}')
            a(f's_setpc_b64 s[{sRET}:{sRET+1}]')
            if h < 7: a.label(f'FH{i}{h+1}')
        vO = vT + 22
        a.label(f'OVF{i}')
        a(f'''s_sub_u32 s{sTM}, s{sST}, {TSTRIDE:#x}
s_subb_u32 s{sTM+1}, s{sST+1}, 0
s_mov_b32 s{sTM+2}, {TSIZE:#x}
s_mov_b32 s{sTM+3}, 0x20000
v_bfe_u32 v{vO+8}, v{vLANE}, 3, 1
v_lshlrev_b32 v{vO+8}, 3, v{vO+8}
s_lshl_b32 s{sT}, s3, 6
s_add_u32 s{sT}, s{sT}, {OVFI + si*64}
v_add_u32 v{vO+8}, s{sT}, v{vO+8}''')
        for k in range(4): a(f'ds_read_b64 {R(vO+2*k,2)}, v{vO+8} offset:{16*k}')
        a(f'v_lshrrev_b32 v{vO+8}, 4, v{vLANE}\ns_waitcnt lgkmcnt(0)')
        a.label(f'OVL{i}')
        a(f'''v_max_u32 v{vO+9}, v{vO+1}, v{vO+3}
v_max3_u32 v{vO+9}, v{vO+9}, v{vO+5}, v{vO+7}
v_cmp_lt_u32 vcc, v{vO+8}, v{vO+9}
s_cbranch_vccz FINB{i}''')
        for k in range(4):
            a(f'''v_lshl_add_u32 v{vO+10+k}, v{vO+8}, 2, v{vO+2*k}
buffer_load_dword v{vO+10+k}, v{vO+10+k}, s[{sOV}:{sOV+3}], 0 offen sc1''')
        a('s_waitcnt vmcnt(0)')
        for kk in (0, 2):
            for k in (kk, kk + 1):
                a(f'''v_add_u32 v{vO+10+k}, v{vO+10+k}, v{vP16}
v_cmp_lt_u32 vcc, v{vO+8}, v{vO+2*k+1}
v_cndmask_b32 v{vO+10+k}, -1, v{vO+10+k}, vcc
buffer_load_dwordx4 {R(vH+4*(k&1),4)}, v{vO+10+k}, s[{sTM}:{sTM+3}], 0 offen sc1''')
            a('s_waitcnt vmcnt(0)')
            c = acc + 4 * (kk >> 1)
            for k in (0, 1): a(f'v_mfma_f32_16x16x32_bf16 {R(c,4)}, {R(vSEL+4*k,4)}, {R(vH+4*k,4)}, {R(c,4)}')
            a('s_nop 3')
        a(f'v_add_u32 v{vO+8}, 4, v{vO+8}')
        a(f's_branch OVL{i}')

def sidx_of_slice(g):
    if g < 3: return g
    if g < 7: return 18 + g
    if g < 11: return g - 4
    if g < 18: return 7 + 17 - g
    return 14 + g - 18
EMASK = sum(1 << sidx_of_slice(g) for g in range(NE // 8))
ALLM = (1 << 25) - 1

def gen_helper(a):
    sH, sDONE, sPE, sTG, sPN, sNEW, sEOK = sHC, sC, sP, sSEG, sSYNC, sLIVE, sPH
    st = f's[{sST}:{sST+3}]'; fl = f's[{sFL}:{sFL+3}]'
    vA, vD, vO, vQ = 24, 28, 32, 36
    a.label('HELPER')
    a(f'''s_setprio 3
s_mov_b32 s{sDONE}, 0
s_mov_b32 s{sPE}, 0
s_mov_b32 s{sTG}, 0
s_mov_b32 s{sPN}, 2
s_mov_b32 s{sEOK}, 0
v_lshlrev_b32 v{vSEQ}, 2, v{vLANE}
v_add_u32 v{vSEQ}, {SEQ}, v{vSEQ}
v_subrev_u32 v{vMB}, {7*1024}, v{vMB}
v_subrev_u32 v{vINFO}, {7*128}, v{vINFO}
v_mov_b32 v{vQ+1}, 1''')
    a.label('H_LOOP')
    a(f'''ds_read_b32 v{vQ}, v{vSEQ}
s_waitcnt lgkmcnt(0)
v_cmp_eq_u32 vcc, s{sH}, v{vQ}
s_andn2_b32 s{sNEW}, vcc_lo, s{sDONE}
s_and_b32 s{sNEW}, s{sNEW}, {ALLM:#x}
s_cbranch_scc0 H_POLL
s_or_b32 s{sDONE}, s{sDONE}, s{sNEW}''')
    a.label('H_ST')
    a(f'''s_ff1_i32_b32 s{sT}, s{sNEW}
s_bitset0_b32 s{sNEW}, s{sT}
s_lshl_b32 s{sT+1}, s{sT}, 10
s_lshl_b32 s{sT}, s{sT}, 7
v_add_u32 v{vA}, s{sT+1}, v{vMB}
v_add_u32 v{vA+1}, s{sT}, v{vINFO}
ds_read_b128 {R(vD,4)}, v{vA}
ds_read_b64 {R(vO,2)}, v{vA+1}
s_waitcnt lgkmcnt(0)
v_add_u32 v{vO}, v{vO}, v{vP16}
v_add_u32 v{vO+1}, v{vO+1}, v{vP16}''')
    if STM != 'none':
        a(f'buffer_store_dwordx4 {R(vD,4)}, v{vO}, {st}, 0 offen {STM}\nbuffer_store_dwordx4 {R(vD,4)}, v{vO+1}, {st}, 0 offen {STM}')
    a(f'''s_cmp_lg_u32 s{sNEW}, 0
s_cbranch_scc1 H_ST
s_cmp_lg_u32 s{sPE}, 0
s_cbranch_scc1 H_L
s_and_b32 s{sT}, s{sDONE}, {EMASK:#x}
s_cmp_eq_u32 s{sT}, {EMASK:#x}
s_cbranch_scc0 H_LOOP
s_mov_b64 exec, 1
v_mov_b32 v{vA}, 0
s_waitcnt vmcnt(0)
buffer_atomic_add v{vQ+1}, v{vA}, {fl}, s{sSH} offen sc1
s_mov_b64 exec, -1
s_mov_b32 s{sPE}, 1
s_add_u32 s{sPN}, s{sPN}, 1''')
    ts(a, sH, 6)
    a.label('H_L')
    a(f'''s_cmp_eq_u32 s{sDONE}, {ALLM:#x}
s_cbranch_scc0 H_LOOP
s_cmp_eq_u32 s{sEOK}, 0
s_cbranch_scc1 H_L2
v_mov_b32 v{vA}, {SYNCW}
v_mov_b32 v{vA+1}, s{sEOK}
ds_write_b32 v{vA}, v{vA+1}
s_mov_b32 s{sEOK}, 0''')
    a.label('H_L2')
    a(f'''s_mov_b64 exec, 1
v_mov_b32 v{vA}, 0x2000
s_waitcnt vmcnt(0)
buffer_atomic_add v{vQ+1}, v{vA}, {fl}, s{sSH} offen sc1
s_mov_b64 exec, -1''')
    ts(a, sH, 7)
    a(f'''s_add_u32 s{sPN}, s{sPN}, 1
s_add_u32 s{sH}, s{sH}, 1
s_mov_b32 s{sDONE}, 0
s_mov_b32 s{sPE}, 0
s_add_u32 s{sST}, s{sST}, {TSTRIDE:#x}
s_addc_u32 s{sST+1}, s{sST+1}, 0''')
    a.label('H_POLL')
    a(f'''s_or_b32 s{sT}, s{sTG}, {1 if os.environ.get('GATE', '1') == '1' else 0}
s_cmp_lt_u32 s{sT}, s{sPN}
s_cbranch_scc0 H_IDLE
s_and_b32 s{sT}, s{sTG}, 1
s_lshl_b32 s{sT+1}, s{sT}, 13
buffer_load_dword v{vQ}, v{vPOLL}, {fl}, s{sT+1} offen sc1
s_lshr_b32 s{sT+2}, s{sTG}, 1
s_add_u32 s{sT+2}, s{sT+2}, 1
s_lshl_b32 s{sT+1}, s{sT+2}, 2
s_lshl_b32 s{sT}, s{sT}, 2
s_add_u32 s{sT}, s{sT}, {SYNCW}
v_mov_b32 v{vA}, s{sT}
v_mov_b32 v{vA+1}, s{sT+2}
s_waitcnt vmcnt(0)
v_cmp_le_u32 vcc, s{sT+1}, v{vQ}
s_cmp_eq_u64 vcc, -1
s_cbranch_scc0 H_FAIL
s_or_b32 s{sT}, s{sTG}, {1 if os.environ.get('GATE') == '2' else 0}
s_add_u32 s{sTG}, s{sTG}, 1
s_cmp_lt_u32 s{sT}, s{sPN}
s_cselect_b32 s{sEOK}, 0, s{sT+2}
s_cbranch_scc0 H_LOOP
ds_write_b32 v{vA}, v{vA+1}
s_cmp_eq_u32 s{sTG}, 14
s_cbranch_scc0 H_LOOP
s_branch H_LAST''')
    a.label('H_FAIL')
    if SLEEP_P: a(f's_sleep {SLEEP_P}')
    a.label('H_IDLE')
    a(f'''s_sleep 1
s_add_u32 s{sSPIN}, s{sSPIN}, 1
s_cmp_gt_u32 s{sSPIN}, {SPIN_LIMIT}
s_cbranch_scc0 H_LOOP
s_endpgm''')
    a.label('H_LAST')

def gen_k2(a):
    a.raw('.globl nag_main_kernel\n.p2align 8\n.type nag_main_kernel,@function')
    a.label('nag_main_kernel')
    if PROF: a(f's_memrealtime s[98:99]\ns_waitcnt lgkmcnt(0)')
    gen_passB(a)
    if PROF: a(f's_memrealtime s[100:101]\ns_waitcnt lgkmcnt(0)\nv_writelane_b32 v{vTS}, s100, 1\nv_writelane_b32 v{vTS}, s98, 0')
    if STOP == 'passB':
        dump_lds(a)
    else:
        srd(a, sA, sWS, sWS + 1, OFF_WF, 18432)
        a(f'v_lshlrev_b32 v24, 4, v{vLANE}')
        for k in range(16):
            a(f's_movk_i32 s{sT}, {k//4*4096}\nbuffer_load_dwordx4 {R(vWM+4*k,4)}, v24, s[{sA}:{sA+3}], s{sT} offen offset:{k%4*1024}')
        a(f's_cmp_eq_u32 s3, 7\ns_cbranch_scc1 HELPER\ns_cmp_eq_u32 s{sLA}, 0\ns_cbranch_scc1 S10')
        gen_engine(a)
        gen_helper(a)
        a('s_branch DBG_END' if STOP else 's_branch ATT_HELPER')
        a.label('ENGINE_DONE')
        if STOP == 'engine':
            for h in range(3, 8):
                src = vTOK + 4 * (h - 3) if h < 7 else vACC + 8
                a(f'''v_xor_b32 v24, {swz(h)}, v{vSW}
s_mul_i32 s{sT}, s3, 5120
s_add_u32 s{sT}, s{sT}, {STG + (h-3)*1024}
v_add_u32 v24, s{sT}, v24
ds_write_b128 v24, {R(src,4)}''')
            a.label('DBG_END')
            ts_dump(a)
            dump_lds(a)
        else:
            import gen3
            gen3.gen_attn(a)
    a.label('K2_END')
    a('s_endpgm')
    return (f'; @launch kernel=nag_main_kernel grid=({NWG},1,1) block=(512,1,1) lds={LDS_SIZE}',
            descriptor('nag_main_kernel', 256, 102))
```

```python
from gen2 import *
from sched import schedule

vWS = 208; vPA = 216; vPB = 220; vQ = 224; vMSK = 228
vXA = 229; vTX = 231; vOW = 235; vTO = 239; vRQA = 241; vRKA = 242; vALW = 243; vALR = 244; vINF = 246; vSW2 = 247
vS0 = 248; vRQ = 252; vSD = 254
vS1 = 0; vRK = 4
X = [8, 16]; POOL = [24 + 4 * i for i in range(8)]; ZP = [56, 128]
YA = [[148, 156, 160, 164], [168, 172, 136, 140]]
sMU = 36
sMG = 44
sMR = 50
sDL = 56; sNS = 57; sSI = 58; sSTG = 59; sG8 = 60

class Pool:
    def __init__(self): self.i = 0
    def get(self):
        r = POOL[self.i % len(POOL)]; self.i += 1; return r

def body():
    L = []; e = L.append
    P = Pool()
    mf = lambda d, A, B, C: e(f'v_mfma_f32_16x16x32_bf16 {R(d,4)}, {R(A,4)}, {R(B,4)}, {R(C,4) if C is not None else 0}')
    for v in range(2):
        S = [vS0, vS1]
        e(f'ds_read_b32 v{vRQ}, v{vRQA} offset:{v*128}')
        e(f'ds_read_b128 {R(vRK,4)}, v{vRKA} offset:{v*128}')
        for b in range(2):
            u = 2 * v + b
            for s in range(2): e(f'ds_read_b128 {R(X[b]+4*s,4)}, v{vXA+s} offset:{u*256}')
            for t in range(4): e(f'ds_read_b64_tr_b16 {R(YA[b][t]+2,2)}, v{vTX+t} offset:{u*256}')
        for b in range(2):
            z = [P.get() for _ in range(4)]
            for t in range(4):
                mf(z[t], vWM + 8 * t, X[b], None); mf(z[t], vWM + 8 * t + 4, X[b] + 4, z[t])
            for t in range(4):
                for k in range(2): e(f'v_cvt_pk_bf16_f32 v{ZP[b]+2*t+k}, v{z[t]+2*k}, v{z[t]+2*k+1}')
            mf(S[b], X[b], ZP[b], None); mf(S[b], X[b] + 4, ZP[b] + 4, S[b])
            y = [P.get() for _ in range(4)]
            for t in range(4):
                mf(y[t], X[b], vWY + 8 * t, None); mf(y[t], X[b] + 4, vWY + 8 * t + 4, y[t])
            for t in range(4):
                for k in range(2): e(f'v_cvt_pk_bf16_f32 v{YA[b][t]+k}, v{y[t]+2*k}, v{y[t]+2*k+1}')
        T = X[0]; F = T; Sm = T + 4; m = X[1]; m2 = m + 1; sm = m + 2; Pk = m + 4
        e(f'v_pk_mul_f32 {R(F,2)}, {R(vRK,2)}, {R(vRQ,2)} op_sel_hi:[1,0]')
        e(f'v_pk_mul_f32 {R(F+2,2)}, {R(vRK+2,2)}, {R(vRQ,2)} op_sel_hi:[1,0]')
        for r in range(4): e(f'v_cndmask_b32_dpp v{Sm+r}, v{vS1+r}, v{vS0+r}, vcc row_ror:8 row_mask:0xf bank_mask:0xf')
        e(f'v_pk_mul_f32 {R(Sm,2)}, {R(Sm,2)}, {R(F,2)}')
        e(f'v_pk_mul_f32 {R(Sm+2,2)}, {R(Sm+2,2)}, {R(F+2,2)}')
        e(f'v_max3_f32 v{m}, v{Sm}, v{Sm+1}, v{Sm+2}')
        e(f'v_max_f32 v{m}, v{m}, v{Sm+3}')
        e(f'ds_swizzle_b32 v{m2}, v{m} offset:0x401f')
        e(f'v_max_f32 v{m}, v{m}, v{m2}')
        e(f'v_pk_add_f32 {R(Sm,2)}, {R(Sm,2)}, {R(m,2)} op_sel_hi:[1,0] neg_lo:[0,1] neg_hi:[0,1]')
        e(f'v_pk_add_f32 {R(Sm+2,2)}, {R(Sm+2,2)}, {R(m,2)} op_sel_hi:[1,0] neg_lo:[0,1] neg_hi:[0,1]')
        for r in range(4): e(f'v_exp_f32 v{Sm+r}, v{Sm+r}')
        e(f'v_pk_add_f32 {R(sm,2)}, {R(Sm,2)}, {R(Sm+2,2)}')
        e(f'v_add_f32 v{sm}, v{sm}, v{sm+1}')
        e(f'ds_swizzle_b32 v{sm+1}, v{sm} offset:0x401f')
        e(f'v_pk_mul_f32 {R(Sm,2)}, {R(Sm,2)}, {R(vRK,2)}')
        e(f'v_pk_mul_f32 {R(Sm+2,2)}, {R(Sm+2,2)}, {R(vRK+2,2)}')
        e(f'v_add_f32 v{sm}, v{sm}, v{sm+1}')
        e(f'v_rcp_f32 v{sm}, v{sm}')
        e(f'v_pk_mul_f32 {R(Sm,2)}, {R(Sm,2)}, {R(sm,2)} op_sel_hi:[1,0]')
        e(f'v_pk_mul_f32 {R(Sm+2,2)}, {R(Sm+2,2)}, {R(sm,2)} op_sel_hi:[1,0]')
        e(f'v_cvt_pk_bf16_f32 v{Pk}, v{Sm}, v{Sm+1}')
        e(f'v_cvt_pk_bf16_f32 v{Pk+1}, v{Sm+2}, v{Sm+3}')
        for k in range(2):
            e(f'v_and_b32 v{vPA+k}, v{Pk+k}, v{vMSK}')
            e(f'v_and_b32_dpp v{vPB+k}, v{Pk+k}, v{vMSK} row_ror:8 row_mask:0xf bank_mask:0xf')
        for b in range(2):
            u = 2 * v + b
            o = [P.get() for _ in range(4)]
            for t in range(4): mf(o[t], YA[b][t], (vPA, vPB)[b], None)
            OP = ZP[b]
            for t in range(4):
                for k in range(2): e(f'v_cvt_pk_bf16_f32 v{OP+2*t+k}, v{o[t]+2*k}, v{o[t]+2*k+1}')
                e(f'ds_write_b64 v{vOW+t}, {R(OP+2*t,2)} offset:{u*256} ; a:O')
            st = S[b]
            mf(st, vWS, OP, None); mf(st, vWS + 4, OP + 4, st)
            q = YA[b][0]; q2 = q + 1; on = q + 2
            e(f'v_dot2_f32_bf16 v{q}, v{OP}, v{OP}, 0')
            e(f'v_dot2_f32_bf16 v{q2}, v{OP+1}, v{OP+1}, 0')
            for j in range(2, 8, 2):
                e(f'v_dot2_f32_bf16 v{q}, v{OP+j}, v{OP+j}, v{q}')
                e(f'v_dot2_f32_bf16 v{q2}, v{OP+j+1}, v{OP+j+1}, v{q2}')
            e(f'v_add_f32 v{q}, v{q}, v{q2}')
            e(f'v_cndmask_b32 v{on}, 0, 1.0, s[{sMU+2*u}:{sMU+2*u+1}]')
            e(f'v_mfma_f32_16x16x4_f32 {R(vQ,4)}, v{on}, v{q}, {R(vQ,4) if u else 0}')
            for k in range(2):
                if u == 0: e(f'v_mov_b32 v{vSD+k}, v{st+k}')
                else: e(f'v_cndmask_b32 v{vSD+k}, v{vSD+k}, v{st+k}, s[{sMG+2*(u-1)}:{sMG+2*(u-1)+1}]')
    a0 = X[0]; a1 = a0 + 1; ofs = a0 + 2
    e(f'ds_read_b32 v{ofs}, v{vINF}')
    e(f'v_mul_f32 v{a0}, v{vSD}, v{vSD}')
    e(f'v_fma_f32 v{a0}, v{vQ}, s{sC64}, -v{a0}')
    e(f'v_max_f32 v{a0}, 0, v{a0}')
    e(f'v_add_f32 v{a0}, {f32(4096e-5)}, v{a0}')
    e(f'v_rsq_f32 v{a0}, v{a0}')
    e(f'v_mul_f32 v{a0}, v{a0}, v{vSD+1}')
    D3 = ('quad_perm:[1,0,3,2]', 'quad_perm:[2,3,0,1]', 'row_half_mirror')
    e(f'v_max_f32_dpp v{a1}, v{a0}, v{a0} {D3[0]} row_mask:0xf bank_mask:0xf')
    for mm in D3[1:]: e(f'v_max_f32_dpp v{a1}, v{a1}, v{a1} {mm} row_mask:0xf bank_mask:0xf')
    e(f'v_sub_f32 v{a0}, v{a0}, v{a1}')
    e(f'v_exp_f32 v{a0}, v{a0}')
    e(f'v_add_f32_dpp v{a1}, v{a0}, v{a0} {D3[0]} row_mask:0xf bank_mask:0xf')
    for mm in D3[1:]: e(f'v_add_f32_dpp v{a1}, v{a1}, v{a1} {mm} row_mask:0xf bank_mask:0xf')
    e(f'v_rcp_f32 v{a1}, v{a1}')
    e(f'v_mul_f32 v{a0}, v{a0}, v{a1}')
    e(f'v_cvt_pk_bf16_f32 v{a0}, v{a0}, v{a0}')
    e(f'ds_write_b16 v{vALW}, v{a0} ; w:AL')
    AB = [X[1], X[1] + 4]
    for v in range(2): e(f'ds_read_b128 {R(AB[v],4)}, v{vALR+v} ; r:AL')
    AD = ZP[0]
    for hi in range(2):
        for t in range(1, 4): e(f'v_xor_b32 v{AD+4*hi+t}, {t*32}, v{vTO+hi}')
    OT = YA[0] + YA[1]
    d = [P.get() for _ in range(4)]
    for v in range(2):
        for t in range(4):
            o = OT[4 * v + t]
            for hi in range(2):
                ad = vTO + hi if t == 0 else AD + 4 * hi + t
                e(f'ds_read_b64_tr_b16 {R(o+2*hi,2)}, v{ad} offset:{v*512} ; R:O')
            mf(d[t], o, AB[v], d[t] if v else None)
    OUT = ZP[1]
    for t in range(4):
        for k in range(2): e(f'v_cvt_pk_bf16_f32 v{OUT+2*t+k}, v{d[t]+2*k}, v{d[t]+2*k+1}')
    e(f'v_or_b32 v{ofs}, v{ofs}, v{vSW2+0}'.replace(f'v{vSW2+0}', f'v{vRQ+1}'))
    return L, OUT, ofs

def gen_attn(a):
    n, g, h, t0, t1, pb = 24, 25, 26, 27, 28, 29
    sRB, sSB, sPS, sAB = sT, sT + 1, sT + 2, sT + 3
    if PROF: ts_dump(a); a('s_memrealtime s[98:99]')
    a(f'''s_mov_b32 s{sSI}, s3
s_mul_i32 s{sSB}, s3, 5120
s_add_u32 s{sSB}, s{sSB}, {STG}
s_movk_i32 s{sPS}, 1024
s_mov_b32 s{sAB}, s{sSTART}
s_movk_i32 s{sDL}, 7168
s_mov_b32 s{sNS}, 3
s_branch ATT_SETUP''')
    a.label('ATT_HELPER')
    if PROF: ts_dump(a); a('s_memrealtime s[98:99]')
    a(f'''s_setprio 0
s_mov_b32 s{sSI}, 21
s_mov_b32 s{sSB}, {XT}
s_movk_i32 s{sPS}, 4096
s_mov_b32 s{sAB}, {HALPHA}
s_movk_i32 s{sDL}, 1024
s_mov_b32 s{sNS}, 4''')
    a.label('ATT_SETUP')
    a(f'''s_load_dwordx2 s[{sX}:{sX+1}], s[0:1], {K_OUT}
v_lshlrev_b32 v{n}, 4, v{vLANE}
s_movk_i32 s{sRB}, 16384
buffer_load_dwordx4 {R(vWS,4)}, v{n}, s[{sA}:{sA+3}], s{sRB} offen
buffer_load_dwordx4 {R(vWS+4,4)}, v{n}, s[{sA}:{sA+3}], s{sRB} offen offset:1024
s_mov_b32 s{sSTG}, s{sSB}
s_lshl_b32 s{sRB}, s{sSI}, 10
s_mul_i32 s{sT+4}, s{sPS}, 3
s_sub_u32 s{sSB}, s{sSB}, s{sT+4}
s_movk_i32 s{sT+4}, {PLANE}
v_mov_b32 v{vSW2}, v{vSW}
v_and_b32 v{n}, 15, v{vLANE}
v_lshrrev_b32 v{g}, 4, v{vLANE}''')
    def plane(mask):
        a(f'''v_mul_lo_u32 v{pb}, v{h}, s{sPS}
v_add_u32 v{pb}, s{sSB}, v{pb}
v_mul_lo_u32 v{t0}, v{h}, s{sT+4}
v_add_u32 v{t0}, s{sRB}, v{t0}
v_cmp_gt_u32 vcc, 3, v{h}
v_cndmask_b32 v{pb}, v{pb}, v{t0}, vcc''')
        if mask is not None: a(f's_mov_b64 s[{mask}:{mask+1}], vcc')
    def orot(dst):
        a(f'''v_lshlrev_b32 v{dst}, 1, v{h}
v_and_b32 v{dst}, 6, v{dst}
v_lshrrev_b32 v{t1}, 2, v{h}
v_or_b32 v{dst}, v{dst}, v{t1}
v_lshlrev_b32 v{dst}, 4, v{dst}''')
    a(f'v_and_b32 v{h}, 7, v{n}')
    plane(sMR)
    a(f'''v_lshrrev_b32 v{t0}, 3, v{n}
v_xor_b32 v{t1}, v{t0}, v{h}
v_and_b32 v{t1}, 1, v{t1}
v_lshl_add_u32 v{vXA}, v{t1}, 7, v{pb}
v_and_b32 v{t1}, 6, v{h}
v_xor_b32 v{t1}, v{t1}, v{g}
v_lshl_add_u32 v{vXA}, v{t1}, 4, v{vXA}
v_xor_b32 v{vXA+1}, 64, v{vXA}
v_lshl_add_u32 v{pb}, v{t0}, 7, v{pb}
v_xor_b32 v{t0}, v{t0}, v{g}
v_and_b32 v{t0}, 1, v{t0}
v_lshl_add_u32 v{pb}, v{t0}, 3, v{pb}''')
    orot(vOW)
    a(f'''v_lshrrev_b32 v{t0}, 1, v{g}
v_lshlrev_b32 v{t0}, 4, v{t0}
v_xor_b32 v{vOW}, v{vOW}, v{t0}
v_add_u32 v{vOW}, v{vOW}, v{pb}''')
    for t in range(1, 4): a(f'v_xor_b32 v{vOW+t}, {t*32}, v{vOW}')
    a(f'''v_and_b32 v{t0}, 1, v{g}
v_lshrrev_b32 v{h}, 2, v{n}
v_lshl_add_u32 v{h}, v{t0}, 2, v{h}''')
    plane(sMR + 2)
    a(f'''v_lshrrev_b32 v{t0}, 1, v{g}
v_xor_b32 v{t0}, v{t0}, v{h}
v_and_b32 v{t0}, 1, v{t0}
v_lshl_add_u32 v{pb}, v{t0}, 7, v{pb}
v_and_b32 v{t0}, 6, v{h}
v_lshl_add_u32 v{pb}, v{t0}, 4, v{pb}
v_and_b32 v{t0}, 3, v{n}
v_lshl_add_u32 v{vTX}, v{t0}, 3, v{pb}''')
    for t in range(1, 4): a(f'v_xor_b32 v{vTX+t}, {t*32}, v{vTX}')
    for hi in range(2):
        a(f'v_lshrrev_b32 v{h}, 2, v{n}')
        if hi: a(f'v_add_u32 v{h}, 4, v{h}')
        plane(None if hi else sMR + 4)
        a(f'v_lshl_add_u32 v{pb}, v{g}, 7, v{pb}')
        orot(vTO + hi)
        a(f'''v_and_b32 v{t0}, 3, v{n}
v_and_b32 v{t1}, 1, v{g}
v_xor_b32 v{t0}, v{t0}, v{t1}
v_lshlrev_b32 v{t0}, 3, v{t0}
v_xor_b32 v{vTO+hi}, v{vTO+hi}, v{t0}
v_add_u32 v{vTO+hi}, v{vTO+hi}, v{pb}''')
    a(f'''s_lshl_b32 s{sT+4}, s{sSI}, 8
s_add_u32 s{sT+4}, s{sT+4}, {STATS}
v_lshrrev_b32 v{t0}, 1, v{g}
v_lshrrev_b32 v{t1}, 3, v{n}
v_xor_b32 v{t1}, v{t1}, v{t0}
v_cmp_eq_u32 vcc, 0, v{t1}
v_cndmask_b32 v{vMSK}, 0, -1, vcc
v_lshl_add_u32 v{t0}, v{t1}, 1, v{t0}
v_lshlrev_b32 v{t0}, 5, v{t0}
v_add_u32 v{t0}, s{sT+4}, v{t0}
v_and_b32 v{t1}, 7, v{n}
v_lshl_add_u32 v{vRQA}, v{t1}, 2, v{t0}
s_lshl_b32 s{sT+4}, s{sSI}, 7
s_add_u32 s{sT+4}, s{sT+4}, {INFO+12}
v_lshlrev_b32 v{vINF}, 4, v{t1}
v_add_u32 v{vINF}, s{sT+4}, v{vINF}
v_and_b32 v{t1}, 1, v{g}
v_lshl_add_u32 v{vRKA}, v{t1}, 4, v{t0}
v_lshlrev_b32 v{vALW}, 1, v{vLANE}
v_add_u32 v{vALW}, s{sAB}, v{vALW}
v_lshlrev_b32 v{t0}, 4, v{g}
v_add_u32 v{t0}, s{sAB}, v{t0}
v_mov_b32 v{t1}, {ZERO}
v_cmp_eq_u32 vcc, v{n}, v{g}
v_cndmask_b32 v{vALR}, v{t1}, v{t0}, vcc
v_add_u32 v{t0}, 64, v{t0}
v_add_u32 v{h}, 4, v{g}
v_cmp_eq_u32 vcc, v{n}, v{h}
v_cndmask_b32 v{vALR+1}, v{t1}, v{t0}, vcc
v_lshlrev_b32 v{t0}, 3, v{g}
v_and_b32 v{t1}, 8, v{n}
v_lshl_or_b32 v{vRQ+1}, v{t1}, 28, v{t0}
v_lshlrev_b32 v{t0}, 2, v{g}
v_sub_u32 v{t0}, v{n}, v{t0}
v_mov_b32 v{t1}, 0x3f80
v_mov_b32 v{h}, 1.0''')
    for k in range(2):
        a(f'''v_cmp_eq_u32 vcc, {2*k}, v{t0}
v_cndmask_b32 v{vPA+2+k}, 0, v{t1}, vcc
v_cmp_eq_u32 vcc, {2*k+1}, v{t0}
v_cndmask_b32 v{vPA+2+k}, v{vPA+2+k}, v{h}, vcc
v_mov_b32 v{vPB+2+k}, v{vPA+2+k}''')
    for u in range(4):
        m = (0xf << (4 * u)) * 0x10001
        a(f's_mov_b32 s{sMU+2*u}, {m:#x}\ns_mov_b32 s{sMU+2*u+1}, {m:#x}')
    a(f'''s_mov_b32 s{sMG}, 0xffff0000
s_mov_b32 s{sMG+1}, 0
s_mov_b32 s{sMG+2}, 0
s_mov_b32 s{sMG+3}, 0xffff
s_mov_b32 s{sMG+4}, 0
s_mov_b32 s{sMG+5}, 0xffff0000
s_mov_b32 vcc_lo, 0x00ff00ff
s_mov_b32 vcc_hi, 0xff00ff00
s_cmp_eq_u32 s3, 7
s_cselect_b64 s[{sMR}:{sMR+1}], -1, s[{sMR}:{sMR+1}]
s_cselect_b64 s[{sMR+2}:{sMR+3}], -1, s[{sMR+2}:{sMR+3}]
s_cselect_b64 s[{sMR+4}:{sMR+5}], -1, s[{sMR+4}:{sMR+5}]
s_cselect_b32 s{sG8}, 1024, 0
s_waitcnt vmcnt(0) lgkmcnt(0)
s_mov_b32 s{sX+2}, {N*128}
s_mov_b32 s{sX+3}, 0x20000''')
    a.label('ATT_LOOP')
    a(f's_cmp_eq_u32 s3, 7\ns_cbranch_scc1 ATT_HWAIT')
    for j in range(3):
        if j < 2: a(f's_cmp_eq_u32 s{sNS}, {3-j}\ns_cbranch_scc0 ATT_ST{j+1}')
        for hh in range(3, 8):
            src = vTOK + 16 * j + 4 * (hh - 3) if hh < 7 else vACC + 8 * (j + 1)
            a(f'''v_xor_b32 v{n}, {swz(hh)}, v{vSW2}
v_add_u32 v{n}, s{sSTG}, v{n}
ds_write_b128 v{n}, {R(src,4)} offset:{(hh-3)*1024}''')
        a('s_branch ATT_BODY')
        if j < 2: a.label(f'ATT_ST{j+1}')
    a.label('ATT_HWAIT')
    a(f'''s_lshl_b32 s{sT}, s{sSI}, 2
s_add_u32 s{sT}, s{sT}, {SEQ}
v_mov_b32 v{n}, s{sT}
ds_read_b32 v{n}, v{n}
s_waitcnt lgkmcnt(0)
v_readfirstlane_b32 s{sT}, v{n}
s_cmp_eq_u32 s{sT}, 7
s_cbranch_scc1 ATT_BODY
s_sleep 1
s_add_u32 s{sSPIN+20}, s{sSPIN+20}, 1
s_cmp_gt_u32 s{sSPIN+20}, {SPIN_LIMIT}
s_cbranch_scc0 ATT_HWAIT
s_endpgm''')
    a.label('ATT_BODY')
    L, OUT, ofs = body()
    out, est = schedule(L)
    print('attention body: %d instr, est %d cycles' % (len(out), est))
    for l in out: a(l)
    for t in range(4): a(f'buffer_store_dwordx2 {R(OUT+2*t,2)}, v{ofs}, s[{sX}:{sX+3}], 0 offen offset:{t*32}')
    a(f'''s_sub_u32 s{sNS}, s{sNS}, 1
s_cmp_eq_u32 s{sNS}, 0
s_cbranch_scc1 ATT_END
s_mov_b64 exec, s[{sMR}:{sMR+1}]''')
    for r in [vXA, vXA + 1] + [vOW + t for t in range(4)]: a(f'v_add_u32 v{r}, s{sDL}, v{r}')
    a(f's_mov_b64 exec, s[{sMR+2}:{sMR+3}]')
    for t in range(4): a(f'v_add_u32 v{vTX+t}, s{sDL}, v{vTX+t}')
    a(f'''s_mov_b64 exec, s[{sMR+4}:{sMR+5}]
v_add_u32 v{vTO}, s{sDL}, v{vTO}
s_mov_b64 exec, -1
v_add_u32 v{vTO+1}, s{sG8}, v{vTO+1}
s_lshr_b32 s{sT}, s{sDL}, 2
v_add_u32 v{vRQA}, s{sT}, v{vRQA}
v_add_u32 v{vRKA}, s{sT}, v{vRKA}
s_lshr_b32 s{sT}, s{sDL}, 3
v_add_u32 v{vINF}, s{sT}, v{vINF}
s_add_u32 s{sSI}, s{sSI}, 1
s_branch ATT_LOOP''')
    a.label('ATT_END')
    if PROF:
        a(f'''s_memrealtime s[100:101]
s_waitcnt lgkmcnt(0)
s_lshl_b32 s{sT}, s2, 3
s_add_u32 s{sT}, s{sT}, s3
s_lshl_b32 s{sT}, s{sT}, 8
v_mov_b32 v24, s100
v_mov_b32 v25, s98
v_mov_b32 v26, 8
s_mov_b64 exec, 1
buffer_store_dwordx2 v[24:25], v26, s[{sTM}:{sTM+3}], s{sT} offen''')
```

```python
from asmlib import Ins, need

def cost(i):
    if i.is_mfma: return 8
    if i.is_trans or i.is_permlane: return 8
    if i.is_valu:
        return 4
    return 4

def latency(p, c):
    if p.is_mfma:
        if c.is_mfma and set(c.C) == p.W and not (p.W & (set(c.A) | set(c.B))): return 16 if p.passes == 4 else 32
        return 4 * (need(p, c) + 1) + 8
    if p.is_ds: return 110
    return max(cost(p), 4 * (need(p, c) + 1))

def schedule(lines, ds_lat=110):
    ins = [Ins(l) for l in lines]
    n = len(ins)
    preds = [[] for _ in range(n)]
    lastw = {}; readers = {}
    last_ds = None
    ds_order = []
    for i, c in enumerate(ins):
        for r in c.R:
            if r in lastw: preds[i].append((lastw[r], latency(ins[lastw[r]], c)))
        for r in c.W:
            if r in lastw: preds[i].append((lastw[r], latency(ins[lastw[r]], c) if ins[lastw[r]].is_mfma or ins[lastw[r]].is_ds else 4))
            for j in readers.get(r, []):
                if j != i: preds[i].append((j, 4 * (need(ins[j], c) + 1)))
        for r in c.R: readers.setdefault(r, []).append(i)
        for r in c.W:
            lastw[r] = i; readers[r] = []
        t = c.text.split(';')
        if len(t) > 1:
            for tok in t[1].split():
                k = ('m', tok[2:])
                if tok.startswith('r:'):
                    if k in lastw: preds[i].append((lastw[k], 4))
                    readers.setdefault(k, []).append(i)
                elif tok.startswith('w:'):
                    if k in lastw: preds[i].append((lastw[k], 4))
                    for j in readers.get(k, []): preds[i].append((j, 4))
                    lastw[k] = i; readers[k] = []
                elif tok.startswith('a:'):
                    readers.setdefault(('ma', tok[2:]), []).append(i)
                    for j in readers.get(k, []): preds[i].append((j, 4))
                elif tok.startswith('R:'):
                    for j in readers.get(('ma', tok[2:]), []): preds[i].append((j, 4))
    succs = [[] for _ in range(n)]
    for i in range(n):
        for j, l in preds[i]: succs[j].append((i, l))
    prio = [0] * n
    for i in reversed(range(n)):
        prio[i] = cost(ins[i]) + max([l + prio[k] for k, l in succs[i]], default=0)
    done = [None] * n; npred = [len(set(j for j, _ in preds[i])) for i in range(n)]
    ready = [i for i in range(n) if npred[i] == 0]
    t = 0; mfma_free = 0; order = []
    rt = [0] * n
    while ready:
        def start(i):
            s = max(rt[i], t)
            if ins[i].is_mfma: s = max(s, mfma_free)
            return s
        now = [i for i in ready if start(i) <= t]
        if now: i = max(now, key=lambda k: (prio[k], -k))
        else: i = min(ready, key=lambda k: (start(k), -prio[k]))
        s = start(i); done[i] = s; order.append(i); ready.remove(i)
        t = s + cost(ins[i])
        if ins[i].is_mfma: mfma_free = s + 4 * ins[i].passes
        seen = set()
        for k, l in succs[i]:
            rt[k] = max(rt[k], s + l)
            if k not in seen:
                seen.add(k); npred[k] -= 1
                if npred[k] == 0: ready.append(k)
    assert len(order) == n
    out = []; pending = []
    for i in order:
        c = ins[i]
        use = c.R | c.W
        idx = -1
        for k, w in enumerate(pending):
            if w & use: idx = k
        if idx >= 0:
            left = len(pending) - 1 - idx
            out.append(f's_waitcnt lgkmcnt({min(left, 15)})')
            pending = pending[len(pending) - min(left, 15):] if left else []
        if c.is_ds: pending.append(set(c.W))
        out.append(c.text.split(';')[0].rstrip())
    return out, t
```

```python
import sys, os
sys.path.insert(0, os.path.dirname(__file__))
from asmlib import Asm

N = 50000; E = 800000; NPW = 196; NWG = 256; CH = 3128
LO = int(os.environ.get('LO', 48)); ND = int(os.environ.get('ND', 80))
NE = int(os.environ.get('NE', 88))
MB = 1 << 20
TSTRIDE = 16 * MB
NS = NPW - ND
SBASE = (NWG * ND + 63) // 64 * 128
TSIZE = (SBASE + NWG * NS) * 128
OFF_PROBE = 112 * MB
OFF_P = 128 * MB; OFF_T = 132 * MB; OFF_WF = 133 * MB; OFF_FLAGS = 134 * MB; OFF_VOTES = 134 * MB + 65536
OFF_OVF = 136 * MB; OFF_DBG = 144 * MB
K_X, K_SRC, K_DST, K_DIS, K_WQ, K_WK, K_WV, K_WO, K_WR, K_OUT, K_DBG, K_WS = [8 * i for i in range(12)]
LOG2E = 1.4426950408889634
import struct
def f32(x): return '0x%08x' % struct.unpack('<I', struct.pack('<f', x))[0]

def srd(a, d, lo, hi, off, size):
    if off:
        a(f's_add_u32 s{d}, s{lo}, {off:#x}\ns_addc_u32 s{d+1}, s{hi}, 0')
    else:
        a(f's_mov_b32 s{d}, s{lo}\ns_mov_b32 s{d+1}, s{hi}')
    a(f's_mov_b32 s{d+2}, {size:#x}\ns_mov_b32 s{d+3}, 0x20000')

def div196(a, vq, vr, vx, vt):
    a(f'v_mul_u32_u24 v{vq}, 85599, v{vx}\nv_lshrrev_b32 v{vq}, 24, v{vq}\nv_mul_u32_u24 v{vt}, {NPW}, v{vq}\nv_sub_u32 v{vr}, v{vx}, v{vt}')

def rowoff(a, vo, vb, vl, vt, vt2, vdual=None):
    a(f'''v_subrev_u32 v{vt}, {ND}, v{vl}
v_cmp_gt_u32 vcc, {LO}, v{vl}
v_cndmask_b32 v{vt}, v{vt}, v{vl}, vcc
v_mul_u32_u24 v{vo}, {NS}, v{vb}
v_add_u32 v{vt}, {SBASE}, v{vt}
v_add_u32 v{vt}, v{vt}, v{vo}
v_subrev_u32 v{vt2}, {LO}, v{vl}
v_cmp_gt_u32 vcc, {ND}, v{vt2}
v_mul_u32_u24 v{vo}, {ND}, v{vb}
v_add_u32 v{vo}, v{vo}, v{vt2}
v_and_b32 v{vl}, 0xffffffc0, v{vo}
v_add_u32 v{vo}, v{vo}, v{vl}
v_lshrrev_b32 v{vl}, 8, v{vo}
v_and_or_b32 v{vo}, v{vl}, 64, v{vo}
v_cndmask_b32 v{vo}, v{vt}, v{vo}, vcc
v_lshlrev_b32 v{vo}, 7, v{vo}''')

def wave_scan_incl(a, v, t):
    for sh in (1, 2, 4, 8):
        a(f'v_add_u32_dpp v{v}, v{v}, v{v} row_shr:{sh} row_mask:0xf bank_mask:0xf bound_ctrl:0' if False else
          f'v_add_u32_dpp v{v}, v{v}, v{v} row_shr:{sh} row_mask:0xf bank_mask:0xf')
    a(f'v_add_u32_dpp v{v}, v{v}, v{v} row_bcast:15 row_mask:0xa bank_mask:0xf')
    a(f'v_add_u32_dpp v{v}, v{v}, v{v} row_bcast:31 row_mask:0xc bank_mask:0xf')

def wave_sum_f32(a, v):
    for sh in (1, 2, 4, 8):
        a(f'v_add_f32_dpp v{v}, v{v}, v{v} row_shr:{sh} row_mask:0xf bank_mask:0xf')
    a(f'v_add_f32_dpp v{v}, v{v}, v{v} row_bcast:15 row_mask:0xa bank_mask:0xf')
    a(f'v_add_f32_dpp v{v}, v{v}, v{v} row_bcast:31 row_mask:0xc bank_mask:0xf')

def gen_k1(a):
    HIST = 0; STG = 1024
    a.raw('.globl nag_part_kernel\n.p2align 8\n.type nag_part_kernel,@function')
    a.label('nag_part_kernel')
    a(f'''s_cmp_ge_u32 s2, {NWG + 2}
s_cbranch_scc1 K1_END
s_load_dwordx4 s[4:7], s[0:1], {K_SRC}
s_load_dwordx2 s[8:9], s[0:1], {K_WS}
v_readfirstlane_b32 s3, v0
s_lshr_b32 s3, s3, 6
s_cmp_ge_u32 s2, {NWG}
s_cbranch_scc1 K1_WEIGHTS
s_cmp_eq_u32 s3, 15
s_cbranch_scc1 K1_PROBE
s_cmp_ge_u32 s3, 13
s_cbranch_scc1 K1_END
s_waitcnt lgkmcnt(0)''')
    srd(a, 12, 4, 5, 0, E * 4)
    srd(a, 16, 6, 7, 0, E * 4)
    a(f'''s_mul_i32 s10, s2, {CH * 4}
v_lshlrev_b32 v1, 4, v0
v_add_u32 v2, s10, v1
buffer_load_dwordx4 v[8:11], v2, s[16:19], 0 offen
buffer_load_dwordx4 v[4:7], v2, s[12:15], 0 offen''')
    srd(a, 20, 8, 9, OFF_P, NWG * CH * 4)
    srd(a, 24, 8, 9, OFF_T, NWG * 1024)
    srd(a, 28, 8, 9, OFF_FLAGS, 16384)
    a(f'''v_mov_b32 v3, 0
v_lshlrev_b32 v12, 2, v0
v_cmp_gt_u32 vcc, 256, v0
s_and_saveexec_b64 s[32:33], vcc
ds_write_b32 v12, v3
s_mov_b64 exec, s[32:33]
s_cmp_lg_u32 s2, 0
s_cbranch_scc1 K1_NOFLAG
v_lshlrev_b32 v13, 7, v0
buffer_store_dword v3, v13, s[28:31], 0 offen''')
    a.label('K1_NOFLAG')
    a(f'''s_movk_i32 s11, {CH // 4}
s_cmp_eq_u32 s2, {NWG - 1}
s_cselect_b32 s11, {(E - (NWG - 1) * CH) // 4}, s11
v_cmp_gt_u32 vcc, s11, v0
s_waitcnt lgkmcnt(0)
s_barrier
s_and_saveexec_b64 s[34:35], vcc
s_waitcnt vmcnt(1)''')
    for k in range(4):
        div196(a, 16 + k, 8 + k, 8 + k, 24)
        a(f'v_lshlrev_b32 v{16+k}, 2, v{16+k}')
    a('v_mov_b32 v3, 1')
    for k in range(4):
        a(f'ds_add_rtn_u32 v{20+k}, v{16+k}, v3')
    a('s_waitcnt vmcnt(0)')
    for k in range(4):
        div196(a, 24, 25, 4 + k, 26)
        a(f'v_cmp_lt_u32 vcc, {NE-1}, v25\nv_cndmask_b32 v28, 0, 1, vcc')
        rowoff(a, 4 + k, 24, 25, 26, 27)
        a(f'''v_cndmask_b32 v26, 0, 2, vcc
v_or3_b32 v{4+k}, v{4+k}, v26, v28
v_lshl_or_b32 v{4+k}, v{8+k}, 24, v{4+k}''')
    a('''s_mov_b64 exec, s[34:35]
s_waitcnt lgkmcnt(0)
s_barrier
s_cmp_lg_u32 s3, 0
s_cbranch_scc1 K1_NOSCAN
ds_read_b128 v[24:27], v1
s_waitcnt lgkmcnt(0)
v_add_u32 v29, v24, v25
v_add_u32 v30, v29, v26
v_add_u32 v31, v30, v27
v_mov_b32 v32, v31''')
    wave_scan_incl(a, 32, 33)
    a(f'''v_sub_u32 v32, v32, v31
v_add_u32 v33, v32, v24
v_add_u32 v34, v32, v29
v_add_u32 v35, v32, v30
ds_write_b128 v1, v[32:35]
v_add_u32 v36, v32, v31
v_lshl_or_b32 v40, v33, 16, v32
v_lshl_or_b32 v41, v34, 16, v33
v_lshl_or_b32 v42, v35, 16, v34
v_lshl_or_b32 v43, v36, 16, v35
s_lshl_b32 s36, s2, 10
buffer_store_dwordx4 v[40:43], v1, s[24:27], s36 offen''')
    a.label('K1_NOSCAN')
    a('''s_waitcnt lgkmcnt(0)
s_barrier
v_cmp_gt_u32 vcc, s11, v0
s_and_saveexec_b64 s[34:35], vcc''')
    for k in range(4): a(f'ds_read_b32 v{16+k}, v{16+k}')
    for k in range(4):
        a(f's_waitcnt lgkmcnt({3-k})\nv_add_lshl_u32 v{16+k}, v{16+k}, v{20+k}, 2\nds_write_b32 v{16+k}, v{4+k} offset:{STG}')
    a(f'''s_waitcnt lgkmcnt(0)
s_barrier
ds_read_b128 v[4:7], v1 offset:{STG}
s_waitcnt lgkmcnt(0)
buffer_store_dwordx4 v[4:7], v2, s[20:23], 0 offen
s_endpgm''')
    a.label('K1_PROBE')
    a(f'''s_cmp_ge_u32 s2, 64
s_cbranch_scc1 K1_END
s_waitcnt lgkmcnt(0)
s_add_u32 s12, s8, {4*MB-1:#x}
s_addc_u32 s13, s9, 0
s_and_b32 s12, s12, 0xffc00000
s_add_u32 s12, s12, {OFF_PROBE:#x}
s_addc_u32 s13, s13, 0
s_mov_b32 s14, 0x100000
s_mov_b32 s15, 0x20000''')
    srd(a, 16, 8, 9, OFF_VOTES, 256)
    a(f'''s_lshr_b32 s20, s2, 4
s_lshl_b32 s20, s20, 14
s_and_b32 s21, s2, 15
s_lshl_b32 s21, s21, 9
s_add_u32 s20, s20, s21
v_mov_b32 v1, s20
v_add_u32 v2, 0x80000, v1
buffer_load_dword v3, v2, s[12:15], 0 offen
s_mov_b32 s24, 0
s_waitcnt vmcnt(0)''')
    for rep in range(2):
        for side in range(2):
            a(f'''v_add_u32 v2, {rep*128 + side*8192}, v1
s_memtime s[26:27]
s_waitcnt lgkmcnt(0)
buffer_load_dword v3, v2, s[12:15], 0 offen
s_waitcnt vmcnt(0)
s_memtime s[28:29]
s_waitcnt lgkmcnt(0)
s_sub_u32 s28, s28, s26''')
            a('s_add_u32 s24, s24, s28' if side == 0 else 's_sub_u32 s24, s24, s28')
    a('''s_getreg_b32 s25, hwreg(HW_REG_XCC_ID)
s_lshr_b32 s25, s25, 2
s_and_b32 s25, s25, 1
s_cmp_gt_i32 s24, 0
s_cselect_b32 s24, 1, 0
s_xor_b32 s24, s24, s25
v_mov_b32 v3, s24
s_lshl_b32 s20, s2, 2
v_mov_b32 v2, 0
s_mov_b64 exec, 1
buffer_store_dword v3, v2, s[16:19], s20 offen''')
    a.label('K1_END')
    a('s_endpgm')
    PM = 0; CM = 64 * 65 * 4; RM = CM + 256
    a.label('K1_WEIGHTS')
    a(f'''s_load_dwordx8 s[12:19], s[0:1], {K_WQ}
s_load_dwordx2 s[20:21], s[0:1], {K_WR}
v_and_b32 v1, 15, v0
v_bfe_u32 v2, v0, 4, 2
s_lshr_b32 s22, s3, 2
s_and_b32 s23, s3, 3
s_waitcnt lgkmcnt(0)
s_cmp_eq_u32 s2, {NWG}
s_cselect_b32 s24, s12, s16
s_cselect_b32 s25, s13, s17
s_mov_b32 s26, 8192
s_mov_b32 s27, 0x20000
s_cselect_b32 s28, s14, s18
s_cselect_b32 s29, s15, s19
s_mov_b32 s30, 8192
s_mov_b32 s31, 0x20000
s_lshl_b32 s32, s22, 11
s_lshl_b32 s33, s23, 11
v_lshlrev_b32 v3, 7, v1
v_lshl_add_u32 v3, v2, 4, v3
buffer_load_dwordx4 v[8:11], v3, s[24:27], s32 offen
buffer_load_dwordx4 v[12:15], v3, s[24:27], s32 offen offset:64
s_cmp_eq_u32 s2, {NWG}
s_cbranch_scc0 K1_WO
buffer_load_dwordx4 v[16:19], v3, s[28:31], s33 offen
buffer_load_dwordx4 v[20:23], v3, s[28:31], s33 offen offset:64
s_branch K1_WMM''')
    a.label('K1_WO')
    a('''s_lshl_b32 s33, s23, 5
v_lshlrev_b32 v4, 10, v2
v_lshl_add_u32 v4, v1, 1, v4
v_add_u32 v5, 4096, v4''')
    for s in range(2):
        for j in range(8):
            a(f'buffer_load_ushort v{32 + 8*s + j}, v{4+s}, s[28:31], s33 offen offset:{j*128}')
    a('s_waitcnt vmcnt(0)')
    for j in range(8): a(f'v_lshl_or_b32 v{16+j}, v{33+2*j}, 16, v{32+2*j}')
    a.label('K1_WMM')
    a(f'''s_waitcnt vmcnt(0)
v_mfma_f32_16x16x32_bf16 v[24:27], v[8:11], v[16:19], 0
v_mfma_f32_16x16x32_bf16 v[24:27], v[12:15], v[20:23], v[24:27]
s_lshl_b32 s34, s22, 4
v_lshl_add_u32 v6, v2, 2, s34
v_mul_u32_u24 v6, 65, v6
s_lshl_b32 s34, s23, 4
v_add3_u32 v6, v6, v1, s34
v_lshlrev_b32 v6, 2, v6''')
    for r in range(4): a(f'ds_write_b32 v6, v{24+r} offset:{r*260}')
    a('''s_waitcnt lgkmcnt(0)
s_barrier
s_cmp_ge_u32 s3, 2
s_cbranch_scc1 K1_WMEAN_DONE
v_and_b32 v7, 63, v0
v_lshlrev_b32 v8, 2, v7
v_mul_u32_u24 v9, 260, v7
s_cmp_eq_u32 s3, 0
s_cselect_b32 s34, 260, 4
s_cselect_b64 vcc, -1, 0
v_cndmask_b32 v9, v9, v8, vcc
v_mov_b32 v10, 0
s_mov_b32 s35, 0''')
    a.label('K1_WSUM')
    a(f'''ds_read_b32 v11, v9
v_add_u32 v9, s34, v9
s_add_u32 s35, s35, 1
s_cmp_lt_u32 s35, 64
s_waitcnt lgkmcnt(0)
v_add_f32 v10, v10, v11
s_cbranch_scc1 K1_WSUM
v_mul_f32 v10, {f32(1/64)}, v10
s_cmp_eq_u32 s3, 0
s_cbranch_scc1 K1_WCOL
v_mov_b32 v11, v10''')
    wave_sum_f32(a, 11)
    a(f'''v_readlane_b32 s35, v11, 63
v_mov_b32 v11, s35
v_mul_f32 v11, {f32(1/64)}, v11
v_sub_f32 v10, v10, v11
s_cmp_eq_u32 s2, {NWG}
s_cselect_b64 vcc, -1, 0
v_cndmask_b32 v10, 0, v10, vcc
v_add_u32 v8, 256, v8''')
    a.label('K1_WCOL')
    a(f'ds_write_b32 v8, v10 offset:{CM}')
    a.label('K1_WMEAN_DONE')
    srd(a, 36, 8, 9, OFF_WF, 18432)
    a(f'''s_waitcnt lgkmcnt(0)
s_barrier
s_cmp_ge_u32 s3, 8
s_cbranch_scc1 K1_WSTAT
s_lshr_b32 s22, s3, 1
s_and_b32 s23, s3, 1
s_lshl_b32 s34, s22, 4
v_add_u32 v4, s34, v1
s_cmp_eq_u32 s2, {NWG}
s_cbranch_scc0 K1_WF
v_lshrrev_b32 v4, 2, v1
v_lshlrev_b32 v4, 3, v4
v_and_b32 v5, 3, v1
s_lshr_b32 s34, s22, 1
s_lshl_b32 s34, s34, 5
s_and_b32 s35, s22, 1
s_lshl_b32 s35, s35, 2
s_add_u32 s34, s34, s35
v_add3_u32 v4, v4, v5, s34''')
    a.label('K1_WF')
    a(f'''s_lshl_b32 s34, s23, 5
v_lshl_add_u32 v5, v2, 3, s34
v_mul_u32_u24 v6, 65, v5
v_add_lshl_u32 v6, v6, v4, 2
v_lshlrev_b32 v4, 2, v4
v_lshlrev_b32 v5, 2, v5
ds_read_b32 v7, v4 offset:{CM}
ds_read_b128 v[16:19], v5 offset:{RM}
ds_read_b128 v[20:23], v5 offset:{RM+16}''')
    for j in range(8): a(f'ds_read_b32 v{8+j}, v6 offset:{j*260}')
    a(f'''s_cmp_eq_u32 s2, {NWG}
s_mov_b32 s34, {f32(64.0)}
s_cselect_b32 s34, {f32(0.125*LOG2E*4096)}, s34
s_cselect_b32 s35, 0, 8192
s_waitcnt lgkmcnt(0)''')
    for j in range(8):
        a(f'v_sub_f32 v{8+j}, v{8+j}, v7\nv_sub_f32 v{8+j}, v{8+j}, v{16+j}\nv_mul_f32 v{8+j}, s34, v{8+j}')
    for j in range(4): a(f'v_cvt_pk_bf16_f32 v{24+j}, v{8+2*j}, v{9+2*j}')
    a('''v_lshlrev_b32 v4, 4, v0
buffer_store_dwordx4 v[24:27], v4, s[36:39], s35 offen
s_endpgm''')
    a.label('K1_WSTAT')
    a(f'''s_cmp_eq_u32 s2, {NWG}
s_cbranch_scc1 K1_END2
s_cmp_ge_u32 s3, 10
s_cbranch_scc1 K1_END2''')
    srd(a, 40, 20, 21, 0, 128)
    a(f'''v_and_b32 v7, 63, v0
v_lshlrev_b32 v8, 1, v7
buffer_load_ushort v9, v8, s[40:43], 0 offen
s_and_b32 s23, s3, 1
s_lshl_b32 s34, s23, 6
v_lshl_add_u32 v8, v2, 3, s34
buffer_load_dwordx2 v[12:13], v8, s[40:43], 0 offen
buffer_load_dwordx2 v[14:15], v8, s[40:43], 0 offen offset:32
s_waitcnt vmcnt(0)
v_lshlrev_b32 v9, 16, v9''')
    wave_sum_f32(a, 9)
    a(f'''v_readlane_b32 s35, v9, 63
v_mov_b32 v9, s35
v_mul_f32 v9, {f32(1/64)}, v9
s_mov_b32 s34, {f32(LOG2E*64)}
v_and_b32 v10, 3, v1''')
    for j in range(4):
        a(f'''v_lshlrev_b32 v16, 16, v{12+j}
v_and_b32 v17, 0xffff0000, v{12+j}
v_sub_f32 v16, v16, v9
v_sub_f32 v17, v17, v9
v_mul_f32 v16, s34, v16
v_mul_f32 v17, s34, v17
v_cvt_pk_bf16_f32 v{12+j}, v16, v17
v_cmp_eq_u32 vcc, 1, v10
v_cndmask_b32 v{12+j}, 0, v{12+j}, vcc
v_mov_b32 v16, 0x3f803f80
v_cmp_eq_u32 vcc, 0, v10
v_cndmask_b32 v{12+j}, v{12+j}, v16, vcc''')
    a(f'''v_lshlrev_b32 v4, 4, v7
s_lshl_b32 s34, s23, 10
s_add_u32 s34, s34, 16384
buffer_store_dwordx4 v[12:15], v4, s[36:39], s34 offen''')
    a.label('K1_END2')
    a('s_endpgm')

def descriptor(name, vgpr, sgpr):
    return f'''.amdhsa_kernel {name}
  .amdhsa_next_free_vgpr {vgpr}
  .amdhsa_next_free_sgpr {sgpr}
  .amdhsa_accum_offset {(vgpr + 3) // 4 * 4}
  .amdhsa_group_segment_fixed_size 0
  .amdhsa_kernarg_size 96
  .amdhsa_user_sgpr_count 2
  .amdhsa_user_sgpr_kernarg_segment_ptr 1
  .amdhsa_system_sgpr_workgroup_id_x 1
  .amdhsa_float_denorm_mode_32 3
.end_amdhsa_kernel
'''

def main():
    a = Asm()
    gen_k1(a)
    launches = ['; @launch kernel=nag_part_kernel grid=(258,1,1) block=(1024,1,1) lds=20480']
    desc = descriptor('nag_part_kernel', 48, 48)
    try:
        import gen2
        l2, d2 = gen2.gen_k2(a)
        launches.append(l2); desc += '.p2align 6\n' + d2
    except ImportError:
        pass
    head = open(os.path.join(os.path.dirname(__file__), 'header.txt')).read()
    body = a.finish()
    out = head + '\n'.join(launches) + '\n.amdgcn_target "amdgcn-amd-amdhsa--gfx950"\n.text\n' + body + '.section .rodata,"a"\n.p2align 6\n' + desc
    path = sys.argv[1] if len(sys.argv) > 1 else 'gather_scatter__hybrid_graph_tf_nagphormer__graph.s'
    open(path, 'w').write(out)
    print('wrote', path, 'nops inserted', a.nops)

if __name__ == '__main__':
    main()
```
